```python
import torch

def _softmax(x, axis=-1):
    return torch.softmax(x, dim=axis)
def _gelu(x):
    return torch.nn.functional.gelu(x, approximate="tanh")
def _silu(x):
    return torch.nn.functional.silu(x)
def _sigmoid(x):
    return torch.sigmoid(x)
def _layernorm(x, axis=-1, eps=1e-5):
    m = x.mean(dim=axis, keepdim=True)
    v = x.var(dim=axis, keepdim=True, unbiased=False)
    return (x - m) / torch.sqrt(v + eps)
def _scatter_add(tgt, idx, src, axis=0):
    return tgt.clone().index_add_(axis, idx, src)
def _segment_sum(src, seg, n):
    out = torch.zeros((n,) + src.shape[1:], dtype=src.dtype)
    return out.index_add_(0, seg, src)
def _pad(x, pw):
    flat = tuple(v for pair in reversed(pw) for v in pair)
    return torch.nn.functional.pad(x, flat)

kernel_name = 'concat_heads__compressed_kv_cla__grouped_kv_mqa__prompt'

def setup_inputs():

    _w = (lambda a: (lambda t: t.to(torch.bfloat16) if t.is_floating_point() else t)(torch.as_tensor(a)))
    def _A_setup():
        B, H, Sq, Sk, D, M = 1, 32, 2048, 2048, 128, 640
        Dc = 4 * D
        return {
            "x": _w((lambda *s: torch.randn(*s, dtype=torch.bfloat16) * 0.4)(B, Sq, M)),
            "c_kv": _w((lambda *s: torch.randn(*s, dtype=torch.bfloat16) * 1.6)(B, Sk, Dc)),
            "w_q": _w((lambda *s: torch.randn(*s, dtype=torch.bfloat16) * 3.2)(M, H, D) * (M ** -0.5)),
            "w_uk": _w((lambda *s: torch.randn(*s, dtype=torch.bfloat16) * 3.2)(Dc, H, D) * (Dc ** -0.5)),
            "w_uv": _w((lambda *s: torch.randn(*s, dtype=torch.bfloat16) * 1.6)(Dc, H, D) * (Dc ** -0.5)),
            "w_o": _w((lambda *s: torch.randn(*s, dtype=torch.bfloat16) * 1.6)(H, D, M) * ((H * D) ** -0.5)),
        }
    _A_in = _A_setup()

    def _B_setup():
        B, S, D, H = 1, 2048, 640, 32
        Dh = D // H
        return {
            "x": _w((lambda *s: torch.randn(*s, dtype=torch.bfloat16) * 0.1)(B, S, D)),
            "wq": _w((lambda *s: torch.randn(*s, dtype=torch.bfloat16) * 0.8)(D, H * Dh)),
            "wk": _w((lambda *s: torch.randn(*s, dtype=torch.bfloat16) * 0.8)(D, Dh)),
            "wv": _w((lambda *s: torch.randn(*s, dtype=torch.bfloat16) * 0.4)(D, Dh)),
            "wo": _w((lambda *s: torch.randn(*s, dtype=torch.bfloat16) * 0.4)(H * Dh, D)),
        }
    _B_in = _B_setup()

    return {
        "A_x": _A_in["x"],
        "A_c_kv": _A_in["c_kv"],
        "A_w_q": _A_in["w_q"],
        "A_w_uk": _A_in["w_uk"],
        "A_w_uv": _A_in["w_uv"],
        "A_w_o": _A_in["w_o"],
        "B_x": _B_in["x"],
        "B_wq": _B_in["wq"],
        "B_wk": _B_in["wk"],
        "B_wv": _B_in["wv"],
        "B_wo": _B_in["wo"],
    }

def reference(A_x, A_c_kv, A_w_q, A_w_uk, A_w_uv, A_w_o, B_x, B_wq, B_wk, B_wv, B_wo):
    def _A_ref(x, c_kv, w_q, w_uk, w_uv, w_o):
        B, Sq, M = x.shape[0], x.shape[1], x.shape[2]
        Sk = c_kv.shape[1]
        H, D = w_q.shape[1], w_q.shape[2]
        q = torch.einsum("bqm,mhd->bhqd", x, w_q)
        k = torch.einsum("bkc,chd->bhkd", c_kv, w_uk)
        v = torch.einsum("bkc,chd->bhkd", c_kv, w_uv)
        scores = torch.einsum("bhqd,bhkd->bhqk", q, k) * (D ** -0.5)
        off = Sk - Sq
        qi = torch.arange(Sq)[:, None]
        kj = torch.arange(Sk)[None, :]
        cmask = kj <= (qi + off)
        scores = torch.where(cmask[None, None], scores, -1e9)
        p = _softmax(scores, axis=-1)
        ctx = torch.einsum("bhqk,bhkd->bhqd", p, v)
        return torch.einsum("bhqd,hdm->bqm", ctx, w_o)

    def _B_ref(x, wq, wk, wv, wo):
        B, S, D = x.shape
        H = 32
        Dh = D // H
        q = (lambda x, *d: x.permute(*d))((x @ wq).reshape(B, S, H, Dh), 0, 2, 1, 3)
        k = x @ wk
        v = x @ wv
        scores = torch.einsum("bhqd,bkd->bhqk", q, k) * (Dh ** -0.5)
        p = _softmax(scores, axis=-1)
        o = torch.einsum("bhqk,bkd->bhqd", p, v)
        return (lambda x, *d: x.permute(*d))(o, 0, 2, 1, 3).reshape(B, S, H * Dh) @ wo

    a = _A_ref(A_x, A_c_kv, A_w_q, A_w_uk, A_w_uv, A_w_o)
    b = _B_ref(B_x, B_wq, B_wk, B_wv, B_wo)
    return torch.concatenate([a, b], axis=-1)
```

```python
import re

def vr(n, w=1):
    return f"v{n}" if w == 1 else f"v[{n}:{n+w-1}]"
def ar(n, w=1):
    return f"a{n}" if w == 1 else f"a[{n}:{n+w-1}]"
def sr(n, w=1):
    return f"s{n}" if w == 1 else f"s[{n}:{n+w-1}]"
def R(spec, w=1):
    return (vr if spec[0] == 'v' else ar)(spec[1], w)

_REG = re.compile(r"^(-|abs\()?([vas])(?:(\d+)|\[(\d+):(\d+)\])\)?$")
def regs_of(op):
    op = op.strip()
    if op in ("vcc",): return [("s", "vcc_lo"), ("s", "vcc_hi")]
    if op in ("exec",): return [("s", "exec_lo"), ("s", "exec_hi")]
    if op in ("m0", "vcc_lo", "vcc_hi", "exec_lo", "exec_hi"): return [("s", op)]
    m = _REG.match(op)
    if not m: return []
    k = m.group(2)
    if m.group(3) is not None: return [(k, int(m.group(3)))]
    return [(k, i) for i in range(int(m.group(4)), int(m.group(5)) + 1)]

TRANS = ("v_exp_f32", "v_log_f32", "v_rcp_f32", "v_rsq_f32", "v_sqrt_f32")
class Ins:
    __slots__ = ("text", "op", "kind", "rd", "wr", "passes", "srcc", "srcab", "states", "store_data", "lds_dma")
    def __init__(self, text):
        self.text = text
        t = text.split(";")[0].strip()
        parts = t.split(None, 1)
        op = parts[0]; self.op = op
        rest = parts[1] if len(parts) > 1 else ""
        ops = [x.strip() for x in re.split(r",\s*(?![^\[]*\])", rest)] if rest else []
        mods = ""
        if ops:
            last = ops[-1].split()
            if len(last) > 1:
                mods = " ".join(last[1:]); ops[-1] = last[0]
        self.rd = []; self.wr = []; self.passes = 0; self.srcc = []; self.srcab = []; self.states = 1
        self.store_data = []; self.lds_dma = False
        if op.endswith(":") or op.startswith("."):
            self.kind = "label"; self.states = 0; return
        if op.startswith("v_mfma"):
            self.kind = "mfma"
            self.passes = 8 if "32x32" in op else 4
            self.wr = regs_of(ops[0]); self.srcab = regs_of(ops[1]) + regs_of(ops[2]); self.srcc = regs_of(ops[3])
            self.rd = self.srcab + self.srcc
        elif op.startswith("ds_read"):
            self.kind = "ds"; self.wr = regs_of(ops[0]); self.rd = regs_of(ops[1])
        elif op.startswith("ds_write") or op.startswith("ds_add") or op.startswith("ds_or") or op.startswith("ds_max"):
            self.kind = "ds"; self.rd = sum((regs_of(o) for o in ops), [])
        elif op.startswith("ds_bpermute") or op.startswith("ds_swizzle") or op.startswith("ds_permute"):
            self.kind = "ds"; self.wr = regs_of(ops[0]); self.rd = sum((regs_of(o) for o in ops[1:]), [])
        elif op.startswith("buffer_load") or op.startswith("global_load"):
            self.kind = "vmem"
            if " lds" in (" " + mods) or "_lds_" in op:
                self.lds_dma = True
                self.rd = sum((regs_of(o) for o in ops), []) + [("s", "m0")]
            else:
                self.wr = regs_of(ops[0]); self.rd = sum((regs_of(o) for o in ops[1:]), [])
        elif op.startswith("buffer_store") or op.startswith("global_store"):
            self.kind = "vmem"; self.rd = sum((regs_of(o) for o in ops), [])
            d = regs_of(ops[0]) if op.startswith("buffer") else regs_of(ops[1])
            if len(d) >= 3: self.store_data = d
        elif op.startswith("buffer_atomic") or op.startswith("global_atomic"):
            self.kind = "vmem"; self.rd = sum((regs_of(o) for o in ops), [])
            if "sc0" in mods: self.wr = regs_of(ops[0])
        elif op.startswith("buffer_inv") or op.startswith("buffer_wbl2"):
            self.kind = "vmem"
        elif op.startswith("s_load") or op.startswith("s_memtime") or op.startswith("s_memrealtime"):
            self.kind = "smem"; self.wr = regs_of(ops[0]); self.rd = sum((regs_of(o) for o in ops[1:]), [])
        elif op == "s_waitcnt":
            self.kind = "wait"
        elif op == "s_nop":
            self.kind = "nop"; self.states = int(ops[0], 0) + 1
        elif op in ("s_barrier", "s_endpgm", "s_setprio", "s_sleep") or op.startswith("s_branch") or op.startswith("s_cbranch"):
            self.kind = "ctl"
            if "vcc" in op: self.rd = regs_of("vcc")
            if "exec" in op: self.rd = regs_of("exec")
        elif op.startswith("s_cmp") or op.startswith("s_bitcmp"):
            self.kind = "salu"; self.rd = sum((regs_of(o) for o in ops), [])
        elif op.startswith("s_"):
            self.kind = "salu"; self.wr = regs_of(ops[0]); self.rd = sum((regs_of(o) for o in ops[1:]), [])
            if "saveexec" in op: self.wr += regs_of("exec"); self.rd += regs_of("exec")
        elif op.startswith("v_"):
            self.kind = "valu"
            self.wr = regs_of(ops[0]); self.rd = sum((regs_of(o) for o in ops[1:]), [])
            if "permlane" in op and "swap" in op:
                self.wr += regs_of(ops[1]); self.rd += regs_of(ops[0])
            if op.startswith("v_fmac") or op.startswith("v_writelane"): self.rd += regs_of(ops[0])
            if op.startswith("v_add_co") or op.startswith("v_addc_co") or op.startswith("v_sub_co"):
                self.wr += regs_of(ops[1])
            if op.startswith("v_cndmask") and len(ops) == 3: self.rd += regs_of("vcc")
            if op.startswith("v_cmpx"): self.wr += regs_of("exec")
        else:
            raise ValueError("unknown op: " + text)

def base_op(op):
    return re.sub(r"_(e32|e64|dpp|sdwa)$", "", op)

def pair_need(p, c):
    crd = set(c.rd); cwr = set(c.wr); pw = set(p.wr)
    need = 0; why = ""
    def up(n, w):
        nonlocal need, why
        if n > need: need, why = n, w
    if p.kind == "valu":
        vw = {r for r in pw if r[0] in "va"}; sw = {r for r in pw if r[0] == "s"}
        if c.kind == "mfma" and vw & crd: up(2, "valu->mfma")
        if base_op(p.op) in TRANS and c.kind == "valu" and base_op(c.op) not in TRANS and vw & crd: up(1, "trans->valu")
        if c.kind == "vmem" and sw & crd: up(5, "valu sgpr->vmem")
        if c.kind == "valu" and sw & crd: up(4 if ("readlane" in c.op or "writelane" in c.op) else 2, "valu sgpr->valu")
        if c.kind == "salu" and sw & crd: up(1, "valu sgpr->salu(pad)")
        if c.kind == "ctl" and sw & crd: up(5, "valu vcc/exec->branch(pad)")
        if c.kind == "valu" and ("readfirstlane" in c.op or "readlane" in c.op) and vw & crd: up(1, "valu->readlane")
        if c.kind == "valu" and ("permlane" in c.op or "dpp" in c.text or "row_" in c.text) and vw & crd: up(2, "valu->permlane/dpp")
        if c.kind == "mfma" and ("s", "exec_lo") in sw: up(4, "valu exec->mfma")
    if p.kind == "salu":
        if ("s", "m0") in pw and c.lds_dma: up(1, "m0->dma")
    if p.kind == "mfma":
        big = 12 if p.passes == 8 else 8
        if c.kind == "mfma":
            if pw & set(c.srcab): up(big, "mfma D->mfma AB")
            elif pw & set(c.srcc):
                if not (p.wr == c.srcc and p.passes == c.passes): up(big - 2, "mfma D->mfma C partial")
            elif pw & cwr: up(big - 2, "mfma D->mfma D WAW(pad)")
        elif c.kind in ("valu", "vmem", "ds") and (pw & crd or pw & cwr): up(big, "mfma D->valu/mem")
        if c.kind == "valu" and set(p.srcc) & cwr: up(7 if p.passes == 8 else 3, "mfma C WAR")
    if p.kind == "vmem" and p.store_data and c.kind == "valu" and set(p.store_data) & cwr: up(2, "store data WAR")
    return need, why

def fix_hazards(prefix, seg):
    hist = [Ins(l) for l in prefix[-40:] if l.strip() and not l.strip().startswith(";")]
    out = []
    for l in seg:
        if not l.strip() or l.strip().startswith(";"):
            out.append(l); continue
        c = Ins(l)
        if c.kind not in ("label", "nop", "wait"):
            d = 0; short = 0
            for p in reversed(hist):
                if d >= 20: break
                n, _ = pair_need(p, c)
                short = max(short, n - d)
                d += p.states
            if short > 0:
                nop = f"s_nop {short - 1}"
                out.append(nop); hist.append(Ins(nop))
        out.append(l); hist.append(c)
    return out

def check(lines, name="", verbose=True):
    ins = [Ins(l) for l in lines if l.strip() and not l.strip().startswith(";")]
    probs = []
    for j, c in enumerate(ins):
        if c.kind in ("label", "nop", "wait"): continue
        d = 0; i = j - 1
        while i >= 0 and d < 20:
            p = ins[i]
            need, why = pair_need(p, c)
            if need > d: probs.append(f"{name}: hazard {why}: need {need} have {d}: [{p.text}] -> [{c.text}]")
            d += p.states; i -= 1
    vm = []; lg = []
    for j, c in enumerate(ins):
        if c.kind == "wait":
            m = re.search(r"vmcnt\((\d+)\)", c.text)
            if m:
                k = int(m.group(1)); vm = vm[len(vm) - k:] if k < len(vm) else vm
                if k == 0: vm = []
            m = re.search(r"lgkmcnt\((\d+)\)", c.text)
            if m:
                k = int(m.group(1))
                if k == 0: lg = []
                elif any(e[2] == "smem" for e in lg): probs.append(f"{name}: counted lgkmcnt with smem outstanding: {c.text}")
                else: lg = lg[len(lg) - k:] if k < len(lg) else lg
            continue
        touched = set(c.rd) | set(c.wr)
        for q in (vm, lg):
            for (w, txt, k) in q:
                if w & touched:
                    probs.append(f"{name}: use of in-flight load dest: [{txt}] -> [{c.text}]")
        if c.kind == "vmem": vm.append((set(c.wr), c.text, "vmem"))
        if c.kind == "ds": lg.append((set(c.wr), c.text, "ds"))
        if c.kind == "smem": lg.append((set(c.wr), c.text, "smem"))
        if len(vm) > 63: probs.append(f"{name}: more than 63 vmem outstanding at {c.text}")
        if len(lg) > 15 and c.kind == "ds": pass
    if verbose:
        seen = set()
        for p in probs:
            if p not in seen:
                if len(seen) < 12: print(p)
                seen.add(p)
        if len(seen) >= 12: print(f"{name}: ... {len(seen)} distinct problems")
    return probs

def interleave(mf, fill, budget, cost):
    out = []; k = 0
    for g, m in enumerate(mf):
        out.append(m)
        used = 0
        while k < len(fill) and fill[k][0] <= g:
            c = cost(fill[k][1])
            if used + c > budget and used > 0: break
            out.append(fill[k][1]); used += c; k += 1
    out += [f[1] for f in fill[k:]]
    return out

def std_cost(s):
    op = s.split()[0]
    if base_op(op) in TRANS: return 8
    if op == "s_nop": return 4 * (int(s.split()[1]) + 1)
    return 4

def kernel_text(name, body, vgpr, accum, sgpr=102):
    t = [f".globl {name}", ".p2align 8", f".type {name},@function", f"{name}:"]
    t += [("" if l.endswith(":") else "  ") + l for l in body]
    d = [".p2align 6", f".amdhsa_kernel {name}", f"  .amdhsa_next_free_vgpr {vgpr}", f"  .amdhsa_next_free_sgpr {sgpr}",
         f"  .amdhsa_accum_offset {accum}", "  .amdhsa_group_segment_fixed_size 0", "  .amdhsa_kernarg_size 112",
         "  .amdhsa_user_sgpr_count 2", "  .amdhsa_user_sgpr_kernarg_segment_ptr 1", "  .amdhsa_system_sgpr_workgroup_id_x 1",
         ".end_amdhsa_kernel"]
    return t, d

def insert_lgkm_waits(prefix, seg):
    lg = []
    def do_wait(k):
        nonlocal lg
        lg = [] if k == 0 else (lg[len(lg) - k:] if k < len(lg) else lg)
    def feed(l, out):
        if not l.strip() or l.strip().startswith(";"):
            if out is not None: out.append(l)
            return
        c = Ins(l)
        if c.kind == "wait":
            m = re.search(r"lgkmcnt\((\d+)\)", l)
            if m: do_wait(int(m.group(1)))
        elif c.kind != "label":
            touched = set(c.rd) | set(c.wr)
            last = -1
            for idx, w in enumerate(lg):
                if w & touched: last = idx
            if last >= 0 and out is not None:
                k = min(15, len(lg) - 1 - last)
                out.append(f"s_waitcnt lgkmcnt({k})"); do_wait(k)
            if c.kind in ("ds", "smem"): lg.append(set(c.wr))
        if out is not None: out.append(l)
    for l in prefix: feed(l, None)
    out = []
    for l in seg: feed(l, out)
    return out

def fin(prefix, seg):
    seg = insert_lgkm_waits(prefix, seg)
    return fix_hazards(prefix, seg)
```

```python
WS_KV   = 0
WS_CTX  = 32 << 20
WS_WOF  = 52 << 20
WS_QB   = 59 << 20
WS_KVB  = 62 << 20
WS_SIZE = 268435456
KA = dict(A_x=0, A_ckv=8, A_wq=16, A_wuk=24, A_wuv=32, A_wo=40, B_x=48, B_wq=56, B_wk=64, B_wv=72, B_wo=80, out=88, dbg=96, ws=104)
SZ = dict(A_x=2048*640*2, A_ckv=2048*512*2, A_wq=640*4096*2, A_wuk=512*4096*2, A_wuv=512*4096*2, A_wo=4096*640*2,
          B_x=2048*640*2, B_wq=640*640*2, B_wk=640*20*2, B_wv=640*20*2, B_wo=640*640*2, out=2048*1280*2)
import math
LOG2E = 1.4426950408889634
import struct
def f2u(x): return struct.unpack("<I", struct.pack("<f", x))[0]
def M16(d, a, b, c): return f"v_mfma_f32_16x16x32_bf16 {d}, {a}, {b}, {c}"
def M32(d, a, b, c): return f"v_mfma_f32_32x32x16_bf16 {d}, {a}, {b}, {c}"

def srd(dst, ptr, off_sreg, total, tmp=None):
    o = []
    if off_sreg is None or off_sreg == 0:
        o += [f"s_mov_b32 s{dst}, s{ptr}", f"s_and_b32 s{dst+1}, s{ptr+1}, 0xffff", f"s_mov_b32 s{dst+2}, {total}"]
    elif isinstance(off_sreg, int):
        o += [f"s_add_u32 s{dst}, s{ptr}, {off_sreg}", f"s_addc_u32 s{dst+1}, s{ptr+1}, 0", f"s_and_b32 s{dst+1}, s{dst+1}, 0xffff",
              f"s_mov_b32 s{dst+2}, {total - off_sreg}"]
    else:
        o += [f"s_add_u32 s{dst}, s{ptr}, {off_sreg}", f"s_addc_u32 s{dst+1}, s{ptr+1}, 0", f"s_and_b32 s{dst+1}, s{dst+1}, 0xffff",
              f"s_sub_u32 s{dst+2}, {total}, {off_sreg}"]
    o.append(f"s_mov_b32 s{dst+3}, 0x20000")
    return o

import os
STAMP = int(os.environ.get("STAMP", "0"))
WS_STAMP = 72 << 20
def stamp(i):
    if not STAMP: return []
    return [f"s_memrealtime s[{70+2*i}:{71+2*i}]", "s_memtime s[68:69]", "s_waitcnt lgkmcnt(0)", f"s_mov_b32 s{71+2*i}, s68"]
def stamp_flush(kidx, n, ws_lo, wave_sreg, tag):
    if not STAMP: return []
    o = [f"s_cmp_lg_u32 {wave_sreg}, 0", f"s_cbranch_scc1 L_st_{tag}"]
    o += srd(60, ws_lo, WS_STAMP + kidx * 512 * 128, WS_SIZE)
    o += ["s_lshl_b32 s64, s2, 7", "v_mov_b32 v1, s64"]
    for i in range(n):
        o += [f"v_mov_b32 v2, s{70+2*i}", f"buffer_store_dword v2, v1, s[60:63], 0 offen offset:{4*i}"]
        o += [f"v_mov_b32 v3, s{71+2*i}", f"buffer_store_dword v3, v1, s[60:63], 0 offen offset:{4*i+64}"]
    o += ["s_waitcnt vmcnt(0)", f"L_st_{tag}:"]
    return o
```

```python
from asmlib import *
from common import *
VGPR = 400; ACC = 256; LDS = 159744; GRID = 256
CB = LOG2E / (20 ** 0.5)
XTRA = 102400
XSL = 110592

def gen_k0():
    assert all(((L * 6554) >> 16) == L // 10 for L in range(320))
    o = []; e = o.append
    e("s_cmp_ge_u32 s2, 256"); e("s_cbranch_scc1 L_k0_end")
    e(f"s_load_dwordx4 s[4:7], s[0:1], {KA['B_x']}")
    e(f"s_load_dwordx4 s[8:11], s[0:1], {KA['B_wk']}")
    e(f"s_load_dwordx2 s[44:45], s[0:1], {KA['B_wo']}")
    e(f"s_load_dwordx2 s[46:47], s[0:1], {KA['A_wo']}")
    e(f"s_load_dwordx2 s[48:49], s[0:1], {KA['ws']}")
    o.extend(stamp(0))
    e("v_lshrrev_b32 v1, 6, v0"); e("v_and_b32 v2, 63, v0")
    e("v_readfirstlane_b32 s30, v1")
    e("s_lshr_b32 s28, s2, 3"); e("s_and_b32 s29, s2, 7")
    e("v_and_b32 v4, 15, v2"); e("v_lshrrev_b32 v5, 4, v2")
    e("v_lshlrev_b32 v3, 4, v2")
    e("v_mul_u32_u24 v6, 1280, v4"); e("v_lshlrev_b32 v7, 4, v5"); e("v_add_u32 v6, v6, v7")
    e("s_mul_i32 s32, s28, 81920"); e("s_mul_i32 s33, s30, 320"); e("s_add_u32 s32, s32, s33")
    for j in range(4):
        e(f"s_add_u32 s31, s30, {j}"); e("s_and_b32 s31, s31, 3"); e("s_mul_i32 s31, s31, 20480"); e("s_add_u32 s31, s31, s32")
        e(f"v_add_u32 v{8+j}, s31, v6")
    e("s_mul_i32 s32, s30, 204800"); e("s_mul_i32 s33, s29, 160"); e("s_add_u32 s32, s32, s33")
    for j in range(5):
        e(f"v_add_u32 v6, {64*j}, v2"); e("v_mul_u32_u24 v7, 6554, v6"); e("v_lshrrev_b32 v7, 16, v7")
        e("v_mul_u32_u24 v17, 10, v7"); e("v_sub_u32 v6, v6, v17"); e("v_lshlrev_b32 v6, 4, v6")
        e("v_bfe_u32 v17, v7, 2, 2"); e("v_lshlrev_b32 v17, 3, v17"); e("v_lshrrev_b32 v18, 4, v7"); e("v_lshlrev_b32 v18, 2, v18")
        e("v_and_b32 v7, 3, v7"); e("v_add3_u32 v7, v7, v17, v18"); e("v_mul_u32_u24 v7, 1280, v7")
        e(f"v_add3_u32 v{12+j}, v7, v6, s32")
    e("s_waitcnt lgkmcnt(0)")
    o.extend(srd(12, 4, None, SZ['B_x'])); o.extend(srd(16, 6, None, SZ['B_wq']))
    XB = 64
    e("s_mul_i32 s34, s30, 25600")
    for st in range(5):
        e(f"s_mov_b32 s35, {40960*st}")
        for j in range(5):
            e(f"s_add_u32 m0, s34, {st*5120+j*1024}"); e("s_nop 0")
            e(f"buffer_load_dwordx4 v{12+j}, s[16:19], s35 offen lds")
        for j in range(4):
            e(f"buffer_load_dwordx4 {vr(XB+(st*4+j)*4,4)}, v{8+j}, s[12:15], 0 offen offset:{64*st}")
    e("v_bfe_u32 v6, v2, 2, 2"); e("v_and_b32 v7, 3, v2")
    e("v_lshlrev_b32 v17, 2, v5"); e("v_add_u32 v17, v17, v6"); e("v_mul_u32_u24 v17, 160, v17"); e("v_mul_u32_u24 v18, 40, v7")
    e("v_add3_u32 v20, v17, v18, s34")
    for j in range(1, 4):
        e(f"s_add_u32 s31, s30, {j}"); e("s_and_b32 s31, s31, 3"); e("s_mul_i32 s31, s31, 27648"); e(f"s_add_u32 s31, s31, {(j-1)*9216}")
        e(f"v_add_u32 v{20+j}, s31, v3")
    e("s_mul_i32 s31, s30, 27648"); e("v_add_u32 v24, s31, v3")
    e("s_lshl_b32 s31, s28, 6"); e("s_lshl_b32 s37, s30, 4"); e("s_add_u32 s31, s31, s37"); e("v_add_u32 v25, s31, v4")
    e("v_mul_u32_u24 v25, 1280, v25"); e("v_mul_u32_u24 v17, 40, v5"); e("s_mul_i32 s31, s29, 160"); e("v_add3_u32 v25, v25, v17, s31")
    o.extend(srd(20, 48, WS_QB, WS_QB + SZ['B_x']))
    e(f"s_mov_b32 s38, {f2u(CB)}")
    for r in range(144): e(f"v_accvgpr_write_b32 a{r}, 0")
    WF = 160
    def q_reads(st, b): return [f"ds_read_b64_tr_b16 {vr(WF+36*b+4*nt+2*p,2)}, v20 offset:{st*5120+p*2560+8*nt}" for nt in range(5) for p in range(2)]
    def q_mfma(st, b): return [M16(ar((j*9+nt)*4,4), vr(WF+36*b+4*nt,4), vr(XB+(st*4+j)*4,4), ar((j*9+nt)*4,4)) for nt in range(5) for j in range(4)]
    def reduce(ntile):
        L = ["s_nop 7", "s_barrier"]
        for j in range(1, 4):
            for t in range(ntile): L.append(f"ds_write_b128 v{20+j}, {ar((j*9+t)*4,4)} offset:{t*1024}")
        for r in range(4*ntile): L.append(f"v_accvgpr_read_b32 v{28+r}, a{r}")
        L += ["s_waitcnt lgkmcnt(0)", "s_barrier"]
        for s in range(3):
            for t in range(ntile): L.append(f"ds_read_b128 {vr(64+36*s+4*t,4)}, v24 offset:{s*9216+t*1024}")
        L.append("s_waitcnt lgkmcnt(0)")
        for s in range(3):
            for r in range(4*ntile): L.append(f"v_add_f32 v{28+r}, v{28+r}, v{64+36*s+r}")
        for r in range(20): L.append(f"v_mul_f32 v{28+r}, s38, v{28+r}")
        for r in range(10): L.append(f"v_cvt_pk_bf16_f32 v{64+r}, v{28+2*r}, v{29+2*r}")
        L += [f"buffer_store_dwordx4 v[64:67], v25, s[20:23], 0 offen", f"buffer_store_dwordx4 v[68:71], v25, s[20:23], 0 offen offset:16",
              f"buffer_store_dwordx2 v[72:73], v25, s[20:23], 0 offen offset:32"]
        return L
    e("s_cmp_eq_u32 s29, 0"); e("s_cbranch_scc1 L_k0_kv")
    pre = list(o)
    a = []
    a += ["s_mul_i32 s39, s28, 7", "s_add_u32 s39, s39, s29", "s_sub_u32 s39, s39, 1"]
    a += ["s_cmp_lt_u32 s39, 128", "s_cselect_b32 s50, s46, s44", "s_cselect_b32 s51, s47, s45", f"s_cselect_b32 s53, {SZ['A_wo']}, {SZ['B_wo']}".replace(f"{SZ['A_wo']}, {SZ['B_wo']}", "s54, s55"),
          "s_cselect_b32 s52, 0, 128"]
    a = a[:3] + [f"s_mov_b32 s54, {SZ['A_wo']}", f"s_mov_b32 s55, {SZ['B_wo']}"] + a[3:]
    a += ["s_sub_u32 s52, s39, s52", "s_mul_i32 s52, s52, 40960"]
    a += ["s_mov_b32 s24, s50", "s_and_b32 s25, s51, 0xffff", "s_mov_b32 s26, s53", "s_mov_b32 s27, 0x20000"]
    a += ["s_mul_i32 s31, s30, 10240", "s_add_u32 s52, s52, s31", f"s_add_u32 s31, s31, {XSL}"]
    for j in range(10):
        a += [f"s_add_u32 m0, s31, {1024*j}", f"s_add_u32 s35, s52, {1024*j}", "buffer_load_dwordx4 v3, s[24:27], s35 offen lds"]
    for st in range(5):
        a.append(f"s_waitcnt vmcnt({9*(4-st)+10})")
        a += q_reads(st, st & 1) + ["s_waitcnt lgkmcnt(0)"] + q_mfma(st, st & 1)
    a += ["s_cmp_lt_u32 s39, 128", "s_cselect_b32 s31, 2, 3", "s_cselect_b32 s35, 20480, 5120".replace("20480, 5120", "s56, s57")]
    a = a[:-3] + ["s_mov_b32 s56, 20480", "s_mov_b32 s57, 5120"] + a[-3:]
    a += ["v_lshlrev_b32 v17, s31, v5", "v_add_u32 v17, v17, v6", "v_mul_u32_u24 v17, 1280, v17", "s_mul_i32 s31, s30, 320", f"s_add_u32 s31, s31, {XSL}",
          "v_add3_u32 v26, v17, v18, s31", "v_add_u32 v27, s35, v26"]
    a += ["s_waitcnt vmcnt(0)"]
    a += reduce(5)[:2]
    SL = 200
    for f in range(10):
        c2, nt = divmod(f, 5)
        a += [f"ds_read_b64_tr_b16 {vr(SL+4*f,2)}, v26 offset:{160*c2+8*nt}", f"ds_read_b64_tr_b16 {vr(SL+4*f+2,2)}, v27 offset:{160*c2+8*nt}"]
    a += reduce(5)[2:]
    a += ["s_cmp_ge_u32 s39, 148", "s_cbranch_scc1 L_k0_done"]
    sl = []
    sl += srd(24, 48, WS_WOF, WS_WOF + 8 * 757760)
    sl += ["s_mul_i32 s31, s30, 1515520", "s_mul_i32 s35, s39, 5120", "s_add_u32 s31, s31, s35", "v_add_u32 v17, 4096, v3"]
    for c2 in range(2):
        for nt in range(5):
            f = 5 * c2 + nt
            sl.append(f"buffer_store_dwordx4 {vr(SL+4*f,4)}, v3, s[24:27], s31 offen offset:{1024*nt}" if nt < 4 else
                      f"buffer_store_dwordx4 {vr(SL+4*f,4)}, v17, s[24:27], s31 offen")
        sl.append("s_add_u32 s31, s31, 757760")
    sl.append("s_branch L_k0_done")
    b = ["L_k0_kv:"]
    b += srd(24, 8, None, SZ['B_wk']) + srd(40, 10, None, SZ['B_wv'])
    b += ["s_mul_i32 s31, s30, 14336", f"s_add_u32 s31, s31, {XTRA}", "s_mul_i32 s52, s30, 6400"]
    for m in range(2):
        for j in range(7):
            b += [f"s_add_u32 m0, s31, {7168*m+1024*j}", f"s_add_u32 s35, s52, {1024*j}", f"buffer_load_dwordx4 v3, s[{24+16*m}:{27+16*m}], s35 offen lds"]
    b += ["v_lshlrev_b32 v17, 3, v5", "v_add_u32 v17, v17, v6", "v_mul_u32_u24 v17, 40, v17", "v_lshlrev_b32 v19, 3, v7", "v_add3_u32 v26, v17, v19, s31"]
    b += ["s_waitcnt vmcnt(0)"]
    for st in range(5):
        bb = st & 1
        b += q_reads(st, bb)
        for m in range(2):
            for t in range(2):
                for p in range(2):
                    b.append(f"ds_read_b64_tr_b16 {vr(WF+36*bb+20+8*m+4*t+2*p,2)}, v26 offset:{7168*m+st*1280+p*160+t*32}")
        b += ["s_waitcnt lgkmcnt(0)"] + q_mfma(st, bb)
        for j in range(4):
            for t in range(2):
                x = vr(XB+(st*4+j)*4, 4)
                b.append(M16(ar((j*9+5+t)*4,4), vr(WF+36*bb+20+4*t,4), x, ar((j*9+5+t)*4,4)))
                b.append(M16(ar((j*9+7+t)*4,4), x, vr(WF+36*bb+28+4*t,4), ar((j*9+7+t)*4,4)))
    b += reduce(9)
    b += srd(24, 48, WS_KVB, WS_KVB + 64 * 4096)
    b += ["s_lshl_b32 s31, s28, 1", "s_lshr_b32 s35, s30, 1", "s_add_u32 s31, s31, s35", "s_lshl_b32 s31, s31, 12"]
    b += ["s_and_b32 s36, s30, 1"]
    for t in range(4):
        b += [f"v_cvt_pk_bf16_f32 v{80+2*t}, v{48+4*t}, v{49+4*t}", f"v_cvt_pk_bf16_f32 v{81+2*t}, v{50+4*t}, v{51+4*t}"]
    b += ["s_lshl_b32 s35, s36, 8", "v_lshrrev_b32 v17, 1, v5", "v_lshlrev_b32 v17, 9, v17", "v_and_b32 v19, 1, v5", "v_lshlrev_b32 v18, 3, v19",
          "v_lshlrev_b32 v27, 4, v4", "v_add3_u32 v17, v17, v18, v27", "v_add_u32 v17, s35, v17"]
    b += ["v_cmp_eq_u32 vcc, 1, v5", "v_mov_b32 v90, 0x3f803f80", "v_mov_b32 v91, 0x00003f80", "v_mov_b32 v92, 0",
          "v_cndmask_b32 v90, v92, v90, vcc", "v_cndmask_b32 v91, v92, v91, vcc", "v_cmp_eq_u32 vcc, 0, v5", "s_nop 1",
          "v_cndmask_b32 v82, v90, v82, vcc", "v_cndmask_b32 v83, v91, v83, vcc"]
    b += ["buffer_store_dwordx2 v[80:81], v17, s[24:27], s31 offen", "buffer_store_dwordx2 v[82:83], v17, s[24:27], s31 offen offset:1024"]
    b += ["v_lshlrev_b32 v19, 9, v19", "v_lshrrev_b32 v18, 1, v5", "v_lshlrev_b32 v18, 3, v18", "s_lshl_b32 s35, s36, 10", "s_add_u32 s35, s35, 2048",
          "v_add3_u32 v19, v19, v18, s35"]
    def rho(dst, rreg, hreg):
        return [f"v_lshrrev_b32 v93, 2, v{rreg}", "v_lshlrev_b32 v93, 3, v93", f"v_and_b32 v94, 3, v{rreg}", f"v_lshlrev_b32 v95, 2, v{hreg}",
                "v_add3_u32 v93, v93, v94, v95", "v_lshlrev_b32 v93, 4, v93", f"v_add_u32 v{dst}, v93, v19"]
    b += ["v_cmp_le_u32 vcc, 10, v4", "v_mov_b32 v96, 1", "s_nop 0", "v_cndmask_b32 v96, v92, v96, vcc", "v_mul_u32_u24 v97, 10, v96", "v_sub_u32 v97, v4, v97"]
    b += rho(98, 97, 96)
    b += ["v_subrev_u32 v100, 4, v4", "v_and_b32 v96, 1, v100", "v_lshrrev_b32 v97, 1, v100", "v_add_u32 v97, 10, v97",
          "v_cmp_eq_u32 vcc, 10, v97", "v_mov_b32 v90, 0x3f803f80", "s_nop 0", "v_cndmask_b32 v90, v92, v90, vcc",
          "v_cmp_gt_u32 vcc, 4, v4", "v_add_u32 v101, 6, v4", "v_mov_b32 v102, 1",
          "v_cndmask_b32 v96, v96, v102, vcc", "v_cndmask_b32 v97, v97, v101, vcc", "v_cndmask_b32 v86, v90, v86, vcc", "v_cndmask_b32 v87, v90, v87, vcc"]
    b += rho(99, 97, 96)
    b += ["buffer_store_dwordx2 v[84:85], v98, s[24:27], s31 offen", "buffer_store_dwordx2 v[86:87], v99, s[24:27], s31 offen"]
    done = ["L_k0_done:"] + stamp(1)
    if STAMP: done += ["s_waitcnt vmcnt(0)"] + stamp(2) + stamp_flush(0, 3, 48, "s30", "k0")
    o.extend(a + sl + b + done)
    o.append("L_k0_end:"); o.append("s_endpgm")
    check(pre + a + sl + done, "k0a"); check(pre + b + done, "k0b")
    return o
```

```python
from asmlib import *
from common import *
import os

def gen_k1():
    o = []
    e = o.append
    e("s_cmp_ge_u32 s2, 256"); e("s_cbranch_scc1 L_k1_end")
    e(f"s_load_dwordx2 s[4:5], s[0:1], {KA['A_ckv']}")
    e(f"s_load_dwordx4 s[8:11], s[0:1], {KA['A_wuk']}")
    e(f"s_load_dwordx2 s[6:7], s[0:1], {KA['ws']}")
    o.extend(stamp(0))
    e("v_lshrrev_b32 v1, 6, v0"); e("v_and_b32 v2, 63, v0")
    e("v_readfirstlane_b32 s30, v1")
    e("s_and_b32 s28, s2, 7"); e("s_lshl_b32 s28, s28, 2"); e("s_lshr_b32 s31, s2, 3"); e("s_and_b32 s31, s31, 3")
    e("s_add_u32 s28, s28, s31")
    e("s_lshr_b32 s29, s2, 5")
    e("v_lshrrev_b32 v3, 3, v2"); e("v_and_b32 v4, 7, v2"); e("v_lshrrev_b32 v5, 4, v2")
    e("s_lshl_b32 s31, s30, 16")
    e("v_lshlrev_b32 v3, 10, v3"); e("v_add_u32 v3, s31, v3")
    e("v_xor_b32 v6, v4, v5"); e("v_lshlrev_b32 v6, 4, v6")
    e("v_xor_b32 v7, 64, v6")
    for j in range(4):
        e(f"v_add_u32 v{8+j}, v3, v{6+(j&1)}")
        if j: e(f"v_add_u32 v{8+j}, {7168*j}, v{8+j}")
    e("v_and_b32 v4, 15, v2")
    e("s_lshl_b32 s31, s30, 17")
    e("v_lshlrev_b32 v3, 13, v5"); e("v_add_u32 v3, s31, v3")
    e("v_lshlrev_b32 v6, 1, v5"); e("v_xor_b32 v6, v4, v6"); e("v_lshlrev_b32 v6, 4, v6")
    e("v_xor_b32 v7, 128, v6")
    for j in range(4):
        e(f"v_add_u32 v{12+j}, v3, v{6+(j>>1)}")
        if j: e(f"v_add_u32 v{12+j}, {31744*j}, v{12+j}")
    e("s_lshl_b32 s35, s30, 13"); e("s_add_u32 s36, s35, 4096")
    e("s_lshl_b32 s37, s30, 12"); e("s_add_u32 s38, s37, 49152"); e("s_add_u32 s37, s37, 32768")
    e("s_waitcnt lgkmcnt(0)")
    e("s_lshl_b32 s31, s29, 18")
    o.extend(srd(12, 4, "s31", SZ['A_ckv']))
    e("s_lshl_b32 s31, s28, 8")
    o.extend(srd(16, 8, "s31", SZ['A_wuk']))
    o.extend(srd(20, 10, "s31", SZ['A_wuv']))
    def dma_list(slot):
        L = []
        for half in range(2):
            L.append(f"s_add_u32 m0, s{35+half}, {slot*65536}")
            for j in range(4):
                L.append(f"buffer_load_dwordx4 v{8+j}, s[12:15], s{32+half} offen offset:{1024*j} lds")
        for kv in range(2):
            L.append(f"s_add_u32 m0, s{37+kv}, {slot*65536}")
            for j in range(4):
                L.append(f"buffer_load_dwordx4 v{12+j}, s[{16+4*kv}:{19+4*kv}], s34 offen offset:{1024*j} lds")
        return L
    def fix_m0(L):
        r = []
        for x in L:
            r.append(x)
            if x.startswith("s_add_u32 m0"): r.append("s_nop 0")
        return r
    adv = ["s_add_u32 s32, s32, 128", "s_add_u32 s33, s33, 128", "s_add_u32 s34, s34, 524288"]
    e("s_mov_b32 s32, 0"); e("s_mov_b32 s33, 32768"); e("s_mov_b32 s34, 0")
    o.extend(fix_m0(dma_list(0))); o.extend(adv)
    o.extend(fix_m0(dma_list(1))); o.extend(adv)
    e("s_lshl_b32 s31, s28, 5"); e("s_lshl_b32 s39, s29, 2"); e("s_add_u32 s31, s31, s39"); e("s_lshl_b32 s31, s31, 15")
    o.extend(srd(24, 6, "s31", 32 << 20))
    e("s_and_b32 s40, s30, 1"); e("s_lshr_b32 s41, s30, 1")
    e("s_lshl_b32 s31, s40, 14")
    e("v_lshlrev_b32 v3, 7, v4"); e("v_add_u32 v3, s31, v3")
    e("v_lshrrev_b32 v6, 1, v4"); e("v_xor_b32 v6, v5, v6"); e("v_lshlrev_b32 v6, 4, v6")
    e("v_add_u32 v16, v3, v6"); e("v_xor_b32 v17, 64, v16")
    e("v_add_u32 v18, 0x10000, v16"); e("v_add_u32 v19, 0x10000, v17")
    e("v_lshrrev_b32 v3, 2, v2"); e("v_and_b32 v3, 3, v3")
    e("v_and_b32 v6, 1, v5"); e("v_lshlrev_b32 v6, 2, v6"); e("v_or_b32 v6, v6, v3")
    e("v_lshlrev_b32 v7, 3, v5"); e("v_add_u32 v7, v7, v3"); e("v_lshlrev_b32 v7, 8, v7")
    e("v_and_b32 v3, 3, v2"); e("v_lshlrev_b32 v3, 3, v3"); e("v_add_u32 v7, v7, v3")
    e("s_lshl_b32 s31, s41, 14"); e("s_add_u32 s31, s31, 32768"); e("v_add_u32 v7, s31, v7")
    e("v_lshlrev_b32 v6, 5, v6")
    for dt in range(8):
        e(f"v_xor_b32 v3, {dt*32}, v6"); e(f"v_add_u32 v{20+dt}, v7, v3"); e(f"v_add_u32 v{28+dt}, 0x10000, v{20+dt}")
    e("v_lshlrev_b32 v36, 4, v2")
    for r in range(256): e(f"v_accvgpr_write_b32 a{r}, 0")
    def reads(slot, ks, buf):
        L = []
        base = 64 + 64 * buf
        for t in range(8):
            L.append(f"ds_read_b128 {vr(base+4*t,4)}, v{16+2*slot+ks} offset:{2048*t}")
            for part in range(2):
                L.append(f"ds_read_b64_tr_b16 {vr(base+32+4*t+2*part,2)}, v{20+8*slot+t} offset:{8192*ks+1024*part}")
        return L
    e("s_waitcnt vmcnt(16)"); e("s_barrier")
    o.extend(stamp(1))
    o.extend(reads(0, 0, 0))
    e("s_mov_b32 s42, 0")
    e("s_cmp_eq_u32 s41, 0"); e("s_cbranch_scc0 L_k1_V")
    pre = list(o)
    paths = []
    for kv in range(2):
        nm = "KV"[kv]
        b = []
        def mf(buf):
            base = 64 + 64 * buf
            L = []
            om = os.environ.get("K1ORD", "0")
            if om == "0": order = sorted(((dt, kt) for dt in range(8) for kt in range(8)), key=lambda p: (max(p), p))
            elif om == "1": order = [(dt, kt) for dt in range(8) for kt in range(8)]
            elif om == "2": order = [(dt, kt if dt % 2 == 0 else 7 - kt) for dt in range(8) for kt in range(8)]
            elif om == "3": order = [(dt, kt) for kt in range(8) for dt in range(8)]
            elif om == "4": order = [(dt if kt % 2 == 0 else 7 - dt, kt) for kt in range(8) for dt in range(8)]
            for (dt, kt) in order:
                acc = ar((dt*8+kt)*4, 4); c = vr(base+4*kt, 4); w = vr(base+32+4*dt, 4)
                L.append(M16(acc, w, c, acc) if kv == 0 else M16(acc, c, w, acc))
            return L
        loop = []
        for slot in range(2):
            loop.append("s_waitcnt lgkmcnt(0)")
            fill = [(2*k, x) for k, x in enumerate(reads(slot, 1, 1))]
            loop += interleave(mf(0), fill, 8, std_cost)
            loop.append("s_waitcnt vmcnt(0) lgkmcnt(0)")
            m = mf(1)
            loop += m[:1]
            loop.append("s_barrier")
            rd = reads(1-slot, 0, 0); dm = dma_list(slot) + adv
            fill = [(2*k, x) for k, x in enumerate(rd)]
            pos = 1
            dl = []
            for x in dm:
                dl.append((pos, x))
                pos += 1 if x.startswith("s_") else 3
            fill = sorted(fill + dl, key=lambda t: t[0])
            loop += interleave(m[1:], fill, 8, std_cost)
        head = [] if kv == 0 else ["L_k1_V:"]
        lab = f"L_k1_loop{nm}"
        top = [".p2align 6", f"{lab}:", "s_cmp_eq_u32 s42, 3", "s_cselect_b32 s14, 0, s14", "s_cselect_b32 s18, 0, s18", "s_cselect_b32 s22, 0, s22"]
        bot = ["s_add_u32 s42, s42, 1", "s_cmp_lg_u32 s42, 4", f"s_cbranch_scc1 {lab}"]
        ep = ["s_waitcnt lgkmcnt(0)", "s_nop 7"] + stamp(2)
        ep.append("s_lshl_b32 s43, s40, 16")
        ep.append(f"s_mov_b32 s44, {f2u(LOG2E / 128 ** 0.5)}")
        if kv: ep.append("s_add_u32 s43, s43, 16384")
        n = 0
        for st in range(2):
            for q in range(4):
                for z in range(4):
                    f = q * 4 + z
                    if kv == 0:
                        kt = 4*st + q; ds = z
                        t0 = ((2*ds)*8 + kt)*4; t1 = ((2*ds+1)*8 + kt)*4
                    else:
                        ksp = 2*st + (f >> 3); dt = f & 7
                        t0 = (dt*8 + 2*ksp)*4; t1 = (dt*8 + 2*ksp+1)*4
                    tb = 64 + 16 * (n % 8); n += 1
                    for r in range(4): ep.append(f"v_accvgpr_read_b32 v{tb+r}, a{t0+r}")
                    for r in range(4): ep.append(f"v_accvgpr_read_b32 v{tb+4+r}, a{t1+r}")
                    if kv == 0:
                        for r in range(8): ep.append(f"v_mul_f32 v{tb+r}, s44, v{tb+r}")
                    for r in range(4): ep.append(f"v_cvt_pk_bf16_f32 v{tb+8+r}, v{tb+2*r}, v{tb+2*r+1}")
                    ep.append(f"buffer_store_dwordx4 {vr(tb+8,4)}, v36, s[24:27], s43 offen offset:{1024*z}" + os.environ.get("K1SC", ""))
                ep.append(f"s_add_u32 s43, s43, {4096 if q < 3 else 32768-3*4096}")
        ep += stamp(3)
        if STAMP: ep += ["s_waitcnt vmcnt(0)"] + stamp(4) + stamp_flush(1, 5, 6, "s30", "k1" + nm)
        ep.append("s_endpgm")
        o.extend(head + top + loop + bot + ep)
        paths.append((f"k1{nm}", pre + top + loop + bot + top + loop + bot + ep))
    o.append("L_k1_end:"); o.append("s_endpgm")
    for nm, p in paths: check(p, nm)
    return o
```

```python
from asmlib import *
from common import *
import os
NB = [4, 4, 3, 2, 2, 1, 0, 0]
NB = [int(c) for c in os.environ.get("NB", "44322100")]
assert sum(NB) == 16
NMAX = max(NB)
NEG = f2u(-1e30)
FLAG = 163832
QR = 64; KB = 128; SR = 192; PR = 208; NM = 216; ONES = 232; CL = 32
VL16 = 236; VL16H = 237; VDMA = 238; VRD = 239; T = 240
AO = 0; AL = 128; AV = 144
def Kf(j, t, ds): return vr(KB + 32 * (j & 1) + 4 * (4 * t + ds), 4)
def Vf(j, dt): return ar(AV + 32 * (j & 1) + 4 * dt, 4)
def rdK(j, f, addr, off): return f"ds_read_b128 {vr(KB+32*(j&1)+4*f,4)}, v{addr} offset:{off + (j&1)*8192 + f*1024}"
def rdV(j, f, addr, off): return f"ds_read_b128 {ar(AV+32*(j&1)+4*f,4)}, v{addr} offset:{off + 16384 + (j&1)*8192 + f*1024}"
def stat_addr(tile): return (VL16, tile * 32768) if tile < 2 else (VL16H, (tile - 2) * 32768)

def QK(p, j, cb, last):
    L = []
    for ds in range(4):
        for t in range(2):
            d = vr(SR + 8 * (p & 1) + 4 * t, 4)
            c = d if ds else (vr(CL + 8 * cb + 4 * t, 4) if last else vr(NM + 4 * cb, 4))
            L.append(M16(d, Kf(j, t, ds), vr(QR + 16 * cb + 4 * ds, 4), c))
    return L
def PV(p, j, cb):
    pf = vr(PR + 4 * (p & 1), 4)
    L = [M16(ar(AO + (dt * 4 + cb) * 4, 4), Vf(j, dt), pf, ar(AO + (dt * 4 + cb) * 4, 4)) for dt in range(8)]
    L.append(M16(ar(AL + 4 * cb, 4), vr(ONES, 4), pf, ar(AL + 4 * cb, 4)))
    return L
def SM(p):
    s = SR + 8 * (p & 1); d = PR + 4 * (p & 1)
    ex = [f"v_exp_f32 v{s+k}, v{s+k}" for k in range(8)]
    cv = [f"v_cvt_pk_bf16_f32 v{d+k}, v{s+2*k}, v{s+2*k+1}" for k in range(4)]
    return ex, cv
def block(p, units, extra):
    mf = []
    if p + 2 in units: mf += QK(p + 2, *units[p + 2])
    if p in units: mf += PV(p, *units[p][:2])
    ex, cv = SM(p + 1) if p + 1 in units else ([], [])
    n = len(mf)
    gaps = [[] for _ in range(max(n, 1))]
    extra = list(extra)
    g = 0; ei = 0; ci = 0
    out = []
    seq = []
    while ei < len(ex) or ci < len(cv) or extra:
        cur = []
        while len(cur) < 2:
            if ci < len(cv) and ei >= 2 * ci + 2 and (seq and not (seq[-1] and seq[-1][-1] == ex[2*ci+1] and not cur)) : cur.append(cv[ci]); ci += 1
            elif extra: cur.append(extra.pop(0))
            elif ci < len(cv) and ei >= 2 * ci + 2 and n > 0: cur.append(cv[ci]); ci += 1
            else: break
        if cur: seq.append(cur)
        if ei < len(ex): seq.append([ex[ei]]); ei += 1
        elif not cur: break
    for k, m in enumerate(mf):
        out.append(m)
        if k < len(seq): out += seq[k]
    rest = [x for s in seq[len(mf):] for x in s]
    if not mf:
        r2 = []
        for x in rest:
            if x.startswith("v_cvt") and r2 and r2[-1].startswith("v_exp"): r2.append("s_nop 0")
            r2.append(x)
        rest = r2
    return out + rest

def kv_dma(k, m0expr_reg=None):
    return f"buffer_load_dwordx4 v{VDMA}, s[20:23], s35 offen offset:{1024*(k&3)} lds"
def kv_stage_static(slot):
    L = []
    for k in range(8):
        if k % 4 == 0: L.append(f"s_add_u32 m0, s36, {slot*32768 + (k//4)*4096}")
        L.append(kv_dma(k))
        if k % 4 == 3: L.append("s_add_u32 s35, s35, 4096" if k == 3 else "s_add_u32 s35, s35, 28672")
    return L
def nopfix(L):
    r = []
    for i, x in enumerate(L):
        r.append(x)
        if " m0," in x and i + 1 < len(L) and "lds" in L[i + 1]: r.append("s_nop 0")
    return r

def gen_k2():
    o = []; e = o.append
    e("s_cmp_ge_u32 s2, 256"); e("s_cbranch_scc1 L_k2_end")
    e(f"s_load_dwordx2 s[4:5], s[0:1], {KA['A_x']}")
    e(f"s_load_dwordx2 s[6:7], s[0:1], {KA['A_wq']}")
    e(f"s_load_dwordx2 s[8:9], s[0:1], {KA['ws']}")
    o.extend(stamp(0))
    e("v_lshrrev_b32 v1, 6, v0"); e("v_and_b32 v2, 63, v0")
    e("v_readfirstlane_b32 s30, v1")
    e("s_and_b32 s28, s2, 7"); e("s_lshl_b32 s28, s28, 2"); e("s_lshr_b32 s31, s2, 3"); e("s_and_b32 s31, s31, 3"); e("s_add_u32 s28, s28, s31")
    e("s_lshr_b32 s29, s2, 5")
    e("v_lshrrev_b32 v3, 3, v2"); e("v_and_b32 v4, 7, v2"); e("v_lshrrev_b32 v5, 4, v2")
    e("s_mul_i32 s31, s30, 81920")
    e("v_mul_u32_u24 v3, 1280, v3"); e("v_add_u32 v3, s31, v3")
    e("v_xor_b32 v6, v4, v5"); e("v_lshlrev_b32 v6, 4, v6"); e("v_xor_b32 v7, 64, v6")
    for j in range(4):
        e(f"v_add_u32 v{8+j}, v3, v{6+(j&1)}")
        if j: e(f"v_add_u32 v{8+j}, {9216*j}, v{8+j}")
    e("v_and_b32 v4, 15, v2")
    e("s_lshl_b32 s31, s30, 17")
    e("v_lshlrev_b32 v3, 13, v5"); e("v_add_u32 v3, s31, v3")
    e("v_lshlrev_b32 v6, 1, v5"); e("v_xor_b32 v6, v4, v6"); e("v_lshlrev_b32 v6, 4, v6"); e("v_xor_b32 v7, 128, v6")
    for j in range(4):
        e(f"v_add_u32 v{12+j}, v3, v{6+(j>>1)}")
        if j: e(f"v_add_u32 v{12+j}, {31744*j}, v{12+j}")
    e("s_lshl_b32 s36, s30, 13"); e("s_lshl_b32 s37, s30, 12")
    e("s_waitcnt lgkmcnt(0)")
    e("s_mul_i32 s31, s29, 327680")
    o.extend(srd(12, 4, "s31", SZ['A_x']))
    e("s_lshl_b32 s31, s28, 8")
    o.extend(srd(16, 6, "s31", SZ['A_wq']))
    XS = [65536, 0, 32768]
    def q_dma(s):
        k = s % 3
        L = []
        for half in range(2):
            L += [f"s_add_u32 m0, s36, {XS[k] + 4096*half}", f"s_mov_b32 s32, {s*128 + 40960*half}"]
            L += [f"buffer_load_dwordx4 v{8+j}, s[12:15], s32 offen offset:{1024*j} lds" for j in range(4)]
        L += [f"s_add_u32 m0, s37, {98304 + 16384*k}", f"s_mov_b32 s34, {s*524288}"]
        L += [f"buffer_load_dwordx4 v{12+j}, s[16:19], s34 offen offset:{1024*j} lds" for j in range(4)]
        return L
    for s in range(3): o.extend(q_dma(s))
    e("s_lshl_b32 s31, s28, 20")
    o.extend(srd(20, 8, "s31", 32 << 20))
    o.extend(srd(24, 8, WS_CTX, WS_CTX + 128 * 148 * 1024))
    e("s_mov_b32 s35, 0")
    e("v_lshrrev_b32 v6, 1, v4"); e("v_xor_b32 v6, v5, v6"); e("v_lshlrev_b32 v6, 4, v6")
    e("v_lshlrev_b32 v3, 7, v4"); e("v_add_u32 v3, v3, v6")
    e("s_lshl_b32 s31, s30, 11"); e("v_add_u32 v16, s31, v3"); e("v_xor_b32 v17, 64, v16")
    e("s_sub_u32 s31, 14336, s31"); e("v_add_u32 v18, s31, v3"); e("v_xor_b32 v19, 64, v18")
    for k in range(4): e(f"v_add_u32 v{20+k}, 0x10000, v{16+k}")
    e("v_lshrrev_b32 v3, 2, v2"); e("v_and_b32 v3, 3, v3")
    e("v_and_b32 v6, 1, v5"); e("v_lshlrev_b32 v6, 2, v6"); e("v_or_b32 v6, v6, v3")
    e("v_lshlrev_b32 v7, 3, v5"); e("v_add_u32 v7, v7, v3"); e("v_lshlrev_b32 v7, 8, v7")
    e("v_and_b32 v3, 3, v2"); e("v_lshlrev_b32 v3, 3, v3"); e("v_add_u32 v7, v7, v3"); e("v_add_u32 v7, 98304, v7")
    e("v_lshlrev_b32 v6, 5, v6")
    for dt in range(8):
        e(f"v_xor_b32 v3, {dt*32}, v6"); e(f"v_add_u32 v{24+dt}, v7, v3")
    e(f"v_mov_b32 v6, {FLAG}"); e("v_mov_b32 v7, 0"); e("ds_write_b32 v6, v7")
    e("s_mov_b32 s39, 0")
    for r in range(144): e(f"v_accvgpr_write_b32 a{r}, 0")
    e("v_lshlrev_b32 v3, 2, v5")
    for r in range(4):
        e(f"v_add_u32 v6, {r}, v3"); e(f"v_cmp_gt_u32 {sr(48+2*r,2)}, v6, v4")
    FB = 32
    def q_reads(s, ks, b):
        k = s % 3; L = []
        xs = XS[k]; hi = 4 if xs >= 65536 else 0; xo = xs - 65536 if hi else xs
        X = [f"ds_read_b128 {vr(FB+48*b+4*cb,4)}, v{16+hi+2*(cb&1)+ks} offset:{xo + (cb>>1)*16384}" for cb in range(4)]
        W = [f"ds_read_b64_tr_b16 {vr(FB+48*b+16+4*dt+2*p,2)}, v{24+dt} offset:{16384*k+8192*ks+1024*p}" for dt in range(8) for p in range(2)]
        return X + W
    def q_mf(b, first):
        return [M16(vr(128+(dt*4+cb)*4,4), vr(FB+48*b+16+4*dt,4), vr(FB+48*b+4*cb,4), "0" if first else vr(128+(dt*4+cb)*4,4))
                for dt in range(8) for cb in range(4)]
    e("s_waitcnt vmcnt(24) lgkmcnt(0)"); e("s_barrier")
    o.extend(stamp(1))
    e("v_lshlrev_b32 v1, 4, v2"); e("v_add_u32 v1, s36, v1")
    o.extend(q_reads(0, 0, 0))
    for s in range(10):
        e("s_waitcnt lgkmcnt(0)")
        o.extend(interleave(q_mf(0, s == 0), [(k, x) for k, x in enumerate(q_reads(s, 1, 1))], 8, std_cost))
        vm = 12 if s <= 7 else (8 if s == 8 else None)
        e(f"s_waitcnt vmcnt({vm}) lgkmcnt(0)" if vm is not None else "s_waitcnt lgkmcnt(0)")
        m = q_mf(1, False)
        e(m[0]); e("s_barrier")
        rd = q_reads(s + 1, 0, 0) if s < 9 else []
        if s <= 6: dm = q_dma(s + 3)
        elif s < 9: dm = kv_stage_static(s - 7)
        else: dm = kv_stage_static(2) + kv_stage_static(3)
        dm = [x.replace(f"v{VDMA},", "v1,") for x in dm]
        fill = [(k, x) for k, x in enumerate(rd)]
        pos = 0.5; dl = []
        for x in dm:
            dl.append((pos, x)); pos += 1 if x.startswith("s_") else (2 if s < 9 else 1)
        fill = sorted(fill + dl, key=lambda t: t[0])
        o.extend(nopfix(interleave(m[1:], fill, 8, std_cost)))
    o.extend(stamp(2))
    e("s_nop 7")
    for cb in range(4):
        for ds in range(4):
            for k in range(4):
                a = 128 + ((2*ds + (k >> 1))*4 + cb)*4 + 2*(k & 1)
                e(f"v_cvt_pk_bf16_f32 v{QR+16*cb+4*ds+k}, v{a}, v{a+1}")
    e(f"v_mov_b32 v{VDMA}, v1"); e(f"v_lshlrev_b32 v{VL16}, 4, v2"); e(f"v_add_u32 v{VL16H}, 0x10000, v{VL16}")
    e("v_and_b32 v3, 3, v2"); e("v_cmp_eq_u32 vcc, 0, v3"); e("v_mov_b32 v6, 0x3f803f80"); e("v_mov_b32 v7, 0")
    for r in range(4): e(f"v_cndmask_b32 v{ONES+r}, v7, v6, vcc")
    e("L_att_start:")
    e("s_waitcnt vmcnt(24)"); e("s_barrier")
    o.extend([rdK(0, f, VL16, 0) for f in range(8)] + [rdV(0, f, VL16, 0) for f in range(8)])
    e("s_cmp_lg_u32 s39, 0"); e("s_cbranch_scc1 L_have_max")
    headA = list(o); o = []; e = o.append
    e("s_cmp_eq_u32 s29, 0"); e("s_cselect_b32 s31, 1, 0"); e("s_cmp_lt_u32 s30, 2"); e("s_cselect_b32 s31, s31, 0")
    e("s_and_b32 s33, s30, 1")
    e(f"v_mov_b32 v6, {NEG}"); e("v_mov_b32 v7, 0")
    for t in range(2):
        for r in range(4):
            e("s_cmp_eq_u32 s33, 0")
            e(f"s_cselect_b64 s[56:57], {sr(48+2*r,2)}, 0" if t == 0 else f"s_cselect_b64 s[56:57], -1, {sr(48+2*r,2)}")
            e("s_cmp_eq_u32 s31, 0"); e("s_cselect_b64 s[56:57], 0, s[56:57]")
            e(f"v_cndmask_b32 v{T+4*t+r}, v7, v6, s[56:57]")
    e("s_waitcnt lgkmcnt(8)")
    for cb in range(4):
        for ds in range(4):
            for t in range(2):
                d = vr(CL + 8*cb + 4*t, 4)
                c = d if ds else (vr(T+4*t, 4) if cb == 0 else "0")
                e(M16(d, Kf(0, t, ds), vr(QR+16*cb+4*ds, 4), c))
    e("s_nop 7")
    for cb in range(4):
        s = CL + 8*cb; m = NM + 4*cb
        e(f"v_max3_f32 v{m}, v{s}, v{s+1}, v{s+2}"); e(f"v_max3_f32 v{m+1}, v{s+3}, v{s+4}, v{s+5}")
        e(f"v_max3_f32 v{m}, v{m}, v{s+6}, v{s+7}"); e(f"v_max_f32 v{m}, v{m}, v{m+1}")
    maxA = list(o); o = []; e = o.append
    e("L_xlane_max:")
    for sw in ("v_permlane32_swap_b32", "v_permlane16_swap_b32"):
        for cb in range(4): e(f"v_mov_b32 v{NM+4*cb+1}, v{NM+4*cb}")
        e("s_nop 0")
        for cb in range(4): e(f"{sw} v{NM+4*cb}, v{NM+4*cb+1}")
        e("s_nop 0")
        for cb in range(4): e(f"v_max_f32 v{NM+4*cb}, v{NM+4*cb}, v{NM+4*cb+1}")
    for cb in range(4):
        for r in (1, 2, 3, 0): e(f"v_sub_f32 v{NM+4*cb+r}, 0, v{NM+4*cb}")
    e("s_cmp_lg_u32 s39, 0"); e("s_cbranch_scc1 L_fb_return")
    xl = list(o); o = []; e = o.append
    e("L_have_max:")
    e("s_waitcnt lgkmcnt(8)")
    e(f"v_mov_b32 v6, {NEG}"); e("s_and_b32 s33, s30, 1")
    for par in range(2):
        for t in range(2):
            for r in range(4):
                e(f"s_cmp_eq_u32 s33, {par}")
                e(f"s_cselect_b64 s[56:57], {sr(48+2*r,2)}, 0" if t == 0 else f"s_cselect_b64 s[56:57], -1, {sr(48+2*r,2)}")
                for cb in (par, par + 2): e(f"v_cndmask_b32 v{CL+8*cb+4*t+r}, v{NM+4*cb}, v6, s[56:57]")
    o.extend(stamp(3))
    e("s_cmp_eq_u32 s29, 0"); e("s_cbranch_scc1 L_lead0")
    mid = list(o)
    full = {u: (u // 4, u % 4, False) for u in range(0, 64)}
    def full_extra(p, addr, off_of_step):
        j, r = divmod(p + 1, 4)
        if r in (0, 1): return [rdK(j + 1, 4*r + f, *off_of_step(j + 1)) for f in range(4)]
        return [rdV(j + 1, 4*(r - 2) + f, *off_of_step(j + 1)) for f in range(4)]
    pre = []
    for p in range(-2, 3):
        ex = full_extra(p, None, lambda j: (VL16, 0)) if p >= -1 else []
        pre += block(p, full, ex)
    pre += ["s_mov_b32 s38, 0", "s_lshl_b32 s37, s29, 2", "s_sub_u32 s37, s37, 1"]
    base_path = headA + maxA + xl + mid
    pre = fin(base_path, pre)
    top = [".p2align 6", "L_loop:", "s_waitcnt vmcnt(16) lgkmcnt(0)", "s_barrier",
           "s_add_u32 s33, s38, 32768", "s_and_b32 s33, s33, 0x1ffff", f"v_add_u32 v{VRD}, s33, v{VL16}"]
    loop = []
    for k in range(8):
        p = 3 + 8 + k
        ex = full_extra(p, None, lambda j: (VRD, 0))
        d = []
        if k % 4 == 0: d.append(f"s_add_u32 m0, s36, s38" if k == 0 else "s_add_u32 m0, m0, 4096")
        d.append(kv_dma(k))
        if k == 3: d.append("s_add_u32 s35, s35, 4096")
        if k == 7: d += ["s_add_u32 s35, s35, 28672", "s_mov_b32 s38, s33", "s_sub_u32 s37, s37, 1"]
        ex = ex[:2] + d[:1] + ex[2:] + d[1:] if len(d) > 1 and " m0," in d[0] else ex + d
        loop += block(p, full, ex)
    loop = fin(base_path + pre + top, loop)
    bot = ["s_cmp_lg_u32 s37, 0", "s_cbranch_scc1 L_loop"]
    def diag_units(cnt):
        U = []
        for J in range(8):
            for cb in (3, 2, 1, 0):
                if J < cnt[cb]: U.append((J, cb, J == cnt[cb] - 1))
        return U
    UA = diag_units([1, 4, 5, 8]); UB = diag_units([2, 3, 6, 7])
    assert UA[:2] == UB[:2] and len(UA) == len(UB) == 18
    post_units = {u: (8 + u // 4, u % 4, False) for u in range(-8, 0)}
    post_units.update({0: UA[0], 1: UA[1]})
    post = ["s_waitcnt vmcnt(16) lgkmcnt(0)", "s_barrier"]
    dm = kv_stage_static(3)
    chunks = [dm[0:3], dm[3:6], dm[6:9], dm[9:12], []]
    for k, p in enumerate(range(-5, 0)):
        j, r = divmod(p + 1, 4)
        ex = [rdK(j+1, 4*r+f, VL16, 0) for f in range(4)] if r < 2 else [rdV(j+1, 4*(r-2)+f, VL16, 0) for f in range(4)]
        post += nopfix(block(p, post_units, ex[:1] + chunks[k][:1] + ex[1:] + chunks[k][1:]))
    post += ["s_cmp_lt_u32 s30, 2", "s_cbranch_scc0 L_diagB", "s_branch L_diagA"]
    post = fin(base_path + pre + top + loop + bot, post)
    lead0 = ["L_lead0:"]
    lu = {0: UA[0], 1: UA[1]}
    l0 = block(-2, lu, []) + block(-1, lu, [rdK(1, f, VL16, 0) for f in range(4)])
    lead0 += fin(base_path, l0) + ["s_cmp_lt_u32 s30, 2", "s_cbranch_scc0 L_diagB"]
    def diag_code(U, name):
        units = {d: U[d] for d in range(18)}
        first = {}; last = {}
        for d, (J, cb, _) in enumerate(U):
            first.setdefault(J, d); last[J] = d
        sched = {p: [] for p in range(18)}
        sched[0] += [rdK(1, 4 + f, VL16, 0) for f in range(4)]
        bar = {2: 8, 13: 0}
        def place(grp, need, lo):
            a = max(lo, need - 3)
            bl = [a, a + 1] if a + 1 <= need - 1 else [a]
            assert bl[-1] <= need - 1, (name, need, lo)
            n = len(grp) // len(bl)
            for k, b in enumerate(bl): sched[b] += grp[k*n:(k+1)*n]
        for J in sorted(first):
            pub = 0 if J < 2 else (2 if J < 6 else 13)
            ad = stat_addr(J // 2)
            if J >= 2: place([rdK(J, f, *ad) for f in range(8)], first[J] - 2, max(pub, last[J-2] - 1))
            if J >= 1: place([rdV(J, f, *ad) for f in range(8)], first[J], max(pub, (last[J-2] + 1) if J >= 2 else 0))
        L = [f"{name}:"]
        for p in range(18):
            if p in bar: L += [f"s_waitcnt vmcnt({bar[p]})", "s_barrier"]
            L += block(p, units, sched[p])
        return L
    dA = fin(base_path + pre + top + loop + bot + post, diag_code(UA, "L_diagA")) + ["s_branch L_epiA"]
    dB = fin(base_path + pre + top + loop + bot + post, diag_code(UB, "L_diagB"))
    o = []; e = o.append
    e("L_epiA:")
    o.extend(stamp(4))
    nbp = 0; prp = 0; acc = 0
    for i in range(8):
        nbp |= NB[i] << (4*i);
    pres = [sum(NB[:i]) for i in range(8)]
    e(f"s_lshl_b32 s31, s29, 2"); e(f"s_lshr_b32 s40, {nbp}, s31"); e("s_and_b32 s40, s40, 15")
    plo = sum(pres[i] << (8*i) for i in range(4)); phi = sum(pres[4+i] << (8*i) for i in range(4))
    e(f"s_mov_b32 s42, {plo}"); e(f"s_mov_b32 s43, {phi}"); e("s_lshl_b32 s31, s29, 3"); e("s_lshr_b64 s[42:43], s[42:43], s31"); e("s_and_b32 s41, s42, 255")
    e("s_lshl_b32 s41, s41, 2"); e("s_mul_i32 s31, s30, s40"); e("s_add_u32 s41, s41, s31")
    e("s_nop 2")
    e(f"s_mov_b32 s31, {f2u(2.0**100)}"); e("s_mov_b64 s[56:57], 0")
    for cb in range(4): e(f"v_accvgpr_read_b32 v{T+cb}, a{AL+4*cb}")
    for cb in range(4):
        e(f"v_cmp_ngt_f32 vcc, s31, v{T+cb}"); e("s_nop 1"); e("s_or_b64 s[56:57], s[56:57], vcc")
        e(f"v_cmp_nlt_f32 vcc, 0.5, v{T+cb}"); e("s_nop 1"); e("s_or_b64 s[56:57], s[56:57], vcc")
    e("s_cmp_eq_u64 s[56:57], 0"); e("s_cbranch_scc1 L_voteA")
    e(f"v_mov_b32 v6, {FLAG}"); e("v_mov_b32 v7, 1"); e("ds_write_b32 v6, v7")
    e("L_voteA:")
    e("s_waitcnt lgkmcnt(0)"); e("s_barrier")
    e(f"v_mov_b32 v6, {FLAG}"); e("ds_read_b32 v7, v6")
    o.extend(srd(44, 8, WS_KVB, WS_KVB + 64*4096))
    bd = []
    for s in range(3):
        for k in range(8):
            if k % 4 == 0: bd += [f"s_add_u32 m0, s36, {s*32768+(k//4)*4096}", f"s_mov_b32 s34, {s*32768+(k//4)*4096}"]
            bd.append(f"buffer_load_dwordx4 v{VDMA}, s[44:47], s34 offen offset:{1024*(k&3)} lds")
    e("s_waitcnt lgkmcnt(0)"); e("v_readfirstlane_b32 s31, v7"); e("s_nop 0")
    e("s_cmp_lg_u32 s39, 0"); e("s_cselect_b32 s31, 0, s31"); e("s_cmp_lg_u32 s31, 0"); e("s_cbranch_scc1 L_fbA")
    e("s_cmp_eq_u32 s40, 0"); e("s_cbranch_scc1 L_nopref")
    epi1 = list(o); o = []; e = o.append
    o.extend(bd)
    BQ = 192
    o.extend(srd(60, 8, WS_QB, WS_QB + SZ['B_x']))
    e("s_lshr_b32 s42, s41, 5"); e("s_lshl_b32 s31, s28, 1"); e("s_add_u32 s42, s42, s31"); e("s_and_b32 s43, s41, 31")
    e("v_and_b32 v3, 31, v2"); e("s_lshl_b32 s31, s42, 5"); e("v_add_u32 v3, s31, v3"); e("v_mul_u32_u24 v3, 1280, v3")
    e("s_mul_i32 s31, s43, 40"); e("v_add_u32 v3, s31, v3"); e("v_lshrrev_b32 v6, 5, v2"); e("v_lshlrev_b32 v6, 4, v6"); e("v_add_u32 v6, v3, v6")
    for cb in range(NMAX):
        e(f"buffer_load_dwordx4 {vr(BQ+8*cb,4)}, v6, s[60:63], 0 offen offset:{40*cb}")
        e(f"buffer_load_dwordx2 {vr(BQ+8*cb+4,2)}, v3, s[60:63], 0 offen offset:{40*cb+32}")
    pref = list(o); o = []; e = o.append
    e("L_nopref:")
    for cb in range(4): e(f"v_rcp_f32 v{T+4+cb}, v{T+cb}")
    e("s_lshl_b32 s31, s29, 4"); e("s_add_u32 s32, s31, s30"); e("s_sub_u32 s33, s31, s30"); e("s_add_u32 s33, s33, 7")
    e("s_mul_i32 s32, s32, 151552"); e("s_mul_i32 s33, s33, 151552"); e("s_lshl_b32 s31, s28, 12"); e("s_add_u32 s32, s32, s31"); e("s_add_u32 s33, s33, s31")
    n = 0
    for cb in range(4):
        if cb == 2: e(f"s_add_u32 s32, s32, {8*151552}"); e(f"s_add_u32 s33, s33, {8*151552}")
        for ds in range(4):
            tb = 64 + 16 * (n % 8); n += 1
            for k in range(8): e(f"v_accvgpr_read_b32 v{tb+k}, a{AO+((2*ds+(k>>2))*4+cb)*4+(k&3)}")
            for k in range(8): e(f"v_mul_f32 v{tb+k}, v{tb+k}, v{T+4+cb}")
            for k in range(4): e(f"v_cvt_pk_bf16_f32 v{tb+8+k}, v{tb+2*k}, v{tb+2*k+1}")
            e(f"buffer_store_dwordx4 {vr(tb+8,4)}, v{VL16}, s[24:27], s{32+(cb&1)} offen offset:{1024*ds}")
    o.extend(stamp(5))
    e("s_cmp_eq_u32 s40, 0"); e("s_cbranch_scc1 L_k2_fin")
    epi2 = list(o)
    BK = 128; BV = 144; BS = 64; BP = 96
    VCUR = 112; VNXT = 113
    o = []; e = o.append
    e(f"v_mov_b32 v6, {FLAG}"); e("v_mov_b32 v7, 0"); e("ds_write_b32 v6, v7")
    e("s_mov_b32 s39, 0")
    e("L_B_start:")
    for r in range(16 * NMAX): e(f"v_accvgpr_write_b32 a{r}, 0")
    e("s_mov_b32 s34, 98304"); e("s_mov_b32 s38, 0"); e("s_mov_b32 s37, 8")
    e("s_waitcnt vmcnt(0) lgkmcnt(0)"); e("s_barrier")
    e("s_cmp_lg_u32 s39, 0"); e("s_cbranch_scc1 L_B_have")
    bhead = list(o); o = []; e = o.append
    for f in range(2): e(f"ds_read_b128 {vr(BK+4*f,4)}, v{VL16} offset:{1024*f}")
    for cb in range(NMAX): e(f"v_mov_b32 v{BQ+8*cb+6}, 0"); e(f"v_mov_b32 v{BQ+8*cb+7}, 0")
    e("s_waitcnt lgkmcnt(0)")
    for cb in range(NMAX):
        d = vr(BS + 16*cb, 16)
        e(M32(d, vr(BK, 4), vr(BQ+8*cb, 4), "0")); e(M32(d, vr(BK+4, 4), vr(BQ+8*cb+4, 4), d))
    e("s_nop 11")
    for cb in range(NMAX):
        s = BS + 16*cb; m = T + cb
        e(f"v_max3_f32 v{m}, v{s}, v{s+1}, v{s+2}")
        for k in range(3, 15, 2): e(f"v_max3_f32 v{m}, v{m}, v{s+k}, v{s+k+1}")
        e(f"v_max_f32 v{m}, v{m}, v{s+15}")
    bmax = list(o); o = []; e = o.append
    e("L_B_xlane:")
    for cb in range(NMAX): e(f"v_mov_b32 v{T+8+cb}, v{T+cb}")
    e("s_nop 0")
    for cb in range(NMAX): e(f"v_permlane32_swap_b32 v{T+cb}, v{T+8+cb}")
    e("s_nop 0")
    for cb in range(NMAX):
        m = T + cb; t = T + 8 + cb
        e(f"v_max_f32 v{m}, v{m}, v{t}"); e(f"v_sub_f32 v{m}, 0, v{m}")
        e(f"v_and_b32 v{t}, 0xffff0000, v{m}"); e(f"v_sub_f32 v{m}, v{m}, v{t}"); e(f"v_lshrrev_b32 v{t}, 16, v{t}")
        e(f"v_and_b32 v6, 0xffff0000, v{m}"); e(f"v_or_b32 v{BQ+8*cb+6}, v{t}, v6"); e(f"v_sub_f32 v{m}, v{m}, v6")
        e(f"v_lshrrev_b32 v{BQ+8*cb+7}, 16, v{m}")
    e("s_cmp_lg_u32 s39, 0"); e("s_cbranch_scc1 L_B_fbret")
    bxl = list(o); o = []; e = o.append
    e("L_B_have:")
    ns = sorted(set(x for x in NB if x))
    for nn in ns[:-1]:
        e(f"s_cmp_eq_u32 s40, {nn}"); e(f"s_cbranch_scc1 L_B{nn}")
    e(f"s_branch L_B{ns[-1]}")
    bsel = list(o)
    def bQK(p, n):
        j, cb = divmod(p, n); d = vr(BS + 16*(p & 1), 16)
        return [M32(d, vr(BK+8*(j&1), 4), vr(BQ+8*cb, 4), "0"), M32(d, vr(BK+8*(j&1)+4, 4), vr(BQ+8*cb+4, 4), d)]
    def bPV(p, n):
        j, cb = divmod(p, n); a = ar(16*cb, 16)
        return [M32(a, vr(BV+8*(j&1)+4*f, 4), vr(BP+8*(p&1)+4*f, 4), a) for f in range(2)]
    def bSM(p):
        s = BS + 16*(p & 1); d = BP + 8*(p & 1)
        G4 = []
        for g in range(4):
            L = [f"v_exp_f32 v{s+4*g+k}, v{s+4*g+k}" for k in range(4)]
            G4.append(L)
        cv = [f"v_cvt_pk_bf16_f32 v{d+k}, v{s+2*k}, v{s+2*k+1}" for k in range(8)]
        return G4, cv
    def brd(which, J, per):
        st, js = divmod(J, 8)
        addr = VCUR if st == per else VNXT
        base = (BK if which == 0 else BV) + 8*(J & 1)
        return [f"ds_read_b128 {vr(base+4*f,4)}, v{addr} offset:{js*4096 + which*2048 + 1024*f}" for f in range(2)]
    def bblock(p, n, per, extra, real=True):
        qk = bQK(p + 2, n) if p + 2 >= 0 else []
        pv = bPV(p, n) if p >= 0 else []
        mf = [qk[0], pv[0], qk[1], pv[1]] if qk and pv else qk + pv
        rd = []
        if (p + 3) % n == 0: rd += brd(0, (p + 3) // n, per)
        if (p + 1) % n == 0 and p + 1 >= 0: rd += brd(1, (p + 1) // n, per)
        ext = rd + list(extra)
        if p + 1 >= 0:
            G4, cv = bSM(p + 1)
            gaps = [G4[0][:2] + ext[:2] + G4[0][2:] + cv[0:1], G4[1] + cv[1:3] + ext[2:4], G4[2] + cv[3:5] + ext[4:], G4[3] + cv[5:8]]
        else:
            gaps = [ext, [], [], []]
        out = []
        for k in range(4):
            if k < len(mf): out.append(mf[k])
            out += gaps[k]
        return out
    bcode = []; bpaths = []
    for nn in ns:
        lead = [f"L_B{nn}:", f"v_mov_b32 v{VCUR}, v{VL16}", f"v_add_u32 v{VNXT}, 0x8000, v{VL16}"]
        for p in range(-3, 0):
            lead += bblock(p, nn, 0, [])
        lead = fin(bhead + bmax + bxl + bsel, lead)
        btop = [".p2align 6", f"L_Bloop{nn}:", "s_waitcnt vmcnt(8)", "s_barrier",
                "s_add_u32 s33, s38, 98304", "s_and_b32 s33, s33, 0x1ffff", "s_add_u32 s33, s33, s36"]
        body = []
        nblk = 8 * nn
        for p in range(nblk):
            ex = []
            if p % nn == 0:
                k = p // nn
                if k == 0: ex.append("s_mov_b32 m0, s33")
                if k == 4: ex.append("s_add_u32 m0, s33, 4096")
                ex.append(f"buffer_load_dwordx4 v{VDMA}, s[44:47], s34 offen offset:{1024*(k&3)} lds")
                if k == 3: ex.append("s_add_u32 s34, s34, 4096")
                if k == 7: ex.append("s_add_u32 s34, s34, 28672")
            body += nopfix(bblock(p, nn, 0, ex))
        body += ["s_add_u32 s38, s38, 32768", "s_and_b32 s38, s38, 0x1ffff", "s_add_u32 s33, s38, 32768", "s_and_b32 s33, s33, 0x1ffff",
                 f"v_mov_b32 v{VCUR}, v{VNXT}", f"v_add_u32 v{VNXT}, s33, v{VL16}", "s_sub_u32 s37, s37, 1", "s_waitcnt lgkmcnt(0)"]
        body = fin(bhead + bmax + bxl + bsel + lead + btop, body)
        bbot = ["s_cmp_lg_u32 s37, 0", f"s_cbranch_scc1 L_Bloop{nn}", "s_branch L_epiB"]
        bcode += lead + btop + body + bbot
        bpaths.append(lead + btop + body + bbot + btop + body + bbot)
    o = []; e = o.append
    e("L_epiB:")
    o.extend(stamp(6))
    e("s_nop 11")
    e(f"s_mov_b32 s31, {f2u(2.0**100)}"); e("s_mov_b64 s[56:57], 0")
    for cb in range(NMAX):
        e(f"s_cmp_le_u32 s40, {cb}"); e("s_cbranch_scc1 L_B_chk")
        e(f"v_accvgpr_read_b32 v{T+cb}, a{16*cb+10}")
        e(f"v_cmp_ngt_f32 vcc, s31, v{T+cb}"); e("s_nop 1"); e("s_or_b64 s[56:57], s[56:57], vcc")
        e(f"v_cmp_nlt_f32 vcc, 0.5, v{T+cb}"); e("s_nop 1"); e("s_or_b64 s[56:57], s[56:57], vcc")
    e("L_B_chk:")
    e("s_cmp_eq_u64 s[56:57], 0"); e("s_cbranch_scc1 L_voteB")
    e(f"v_mov_b32 v6, {FLAG}"); e("v_mov_b32 v7, 1"); e("ds_write_b32 v6, v7")
    e("L_voteB:")
    e("s_waitcnt vmcnt(0) lgkmcnt(0)"); e("s_barrier")
    e(f"v_mov_b32 v6, {FLAG}"); e("ds_read_b32 v7, v6")
    e("s_mul_i32 s31, s42, 303104"); e("s_add_u32 s31, s31, 131072"); e("v_bfe_u32 v3, v2, 4, 1"); e("s_mov_b32 s33, 151552"); e("v_mul_lo_u32 v3, s33, v3")
    e("v_lshlrev_b32 v8, 4, v4"); e("v_add3_u32 v3, v3, v8, s31")
    e("v_lshrrev_b32 v8, 5, v2"); e("v_mul_u32_u24 v8, 5, v8"); e("s_mul_i32 s31, s43, 10"); e("v_add_u32 v8, s31, v8")
    e("s_waitcnt lgkmcnt(0)"); e("v_readfirstlane_b32 s31, v7"); e("s_nop 0")
    e("s_cmp_lg_u32 s39, 0"); e("s_cselect_b32 s31, 0, s31"); e("s_cmp_lg_u32 s31, 0"); e("s_cbranch_scc1 L_fbB")
    for cb in range(NMAX):
        e(f"s_cmp_le_u32 s40, {cb}"); e("s_cbranch_scc1 L_k2_fin")
        tb = 64 + 32 * (cb & 1)
        e(f"v_rcp_f32 v9, v{T+cb}")
        for k in range(10): e(f"v_accvgpr_read_b32 v{tb+k}, a{16*cb+k}")
        for k in range(10): e(f"v_mul_f32 v{tb+k}, v{tb+k}, v9")
        for k in range(5):
            e(f"v_cvt_pk_bf16_f32 v{tb+10+k}, v{tb+2*k}, v{tb+2*k+1}")
            e(f"v_add_u32 v10, {10*cb+k}, v8"); e("v_lshrrev_b32 v11, 2, v10"); e("v_and_b32 v10, 3, v10")
            e("v_lshl_add_u32 v11, v11, 8, v3"); e(f"v_lshl_add_u32 v{tb+16+k}, v10, 2, v11")
            e(f"buffer_store_dword v{tb+10+k}, v{tb+16+k}, s[24:27], 0 offen")
    e("L_k2_fin:")
    o.extend(stamp(7))
    if STAMP: o.extend(["s_waitcnt vmcnt(0)"] + stamp(8) + stamp_flush(2, 9, 8, "s30", "k2"))
    e("s_endpgm")
    epiB = list(o)
    o = []; e = o.append
    e("L_fbA:")
    e("s_mov_b32 s39, 1")
    for cb in range(4): e(f"v_mov_b32 v{NM+4*cb}, {NEG}")
    e("s_lshl_b32 s31, s29, 8"); e("v_lshlrev_b32 v3, 2, v5"); e("v_sub_u32 v3, v4, v3"); e("v_add_u32 v3, s31, v3")
    e("s_lshl_b32 s31, s30, 4"); e("v_add_u32 v8, s31, v3"); e("v_add_u32 v10, 128, v8"); e("s_sub_u32 s31, 112, s31"); e("v_add_u32 v9, s31, v3"); e("v_add_u32 v11, 128, v9")
    e("s_lshl_b32 s37, s29, 3"); e("s_add_u32 s37, s37, 8"); e("s_mov_b32 s33, 0"); e(f"v_mov_b32 v6, {NEG}")
    e("L_fbA_loop:")
    e("s_lshr_b32 s34, s33, 1"); e("s_lshl_b32 s34, s34, 15"); e("s_and_b32 s31, s33, 1"); e("s_lshl_b32 s31, s31, 13"); e("s_add_u32 s34, s34, s31")
    for f in range(8):
        if f == 4: e("s_add_u32 s34, s34, 4096")
        e(f"buffer_load_dwordx4 {vr(KB+4*f,4)}, v{VL16}, s[20:23], s34 offen offset:{1024*(f&3)}")
    e("s_waitcnt vmcnt(0)")
    for cb in range(4):
        for ds in range(4):
            for t in range(2):
                d = vr(CL + 8*cb + 4*t, 4)
                e(M16(d, Kf(0, t, ds), vr(QR+16*cb+4*ds, 4), d if ds else "0"))
    e("s_nop 7"); e("s_lshl_b32 s31, s33, 5")
    for cb in range(4):
        for k in range(8):
            e(f"s_add_u32 s34, s31, {16*(k>>2)+(k&3)}"); e(f"v_cmp_gt_i32 vcc, s34, v{8+cb}"); e("s_nop 1")
            e(f"v_cndmask_b32 v7, v{CL+8*cb+k}, v6, vcc"); e(f"v_max_f32 v{NM+4*cb}, v{NM+4*cb}, v7")
    e("s_add_u32 s33, s33, 1"); e("s_cmp_lt_u32 s33, s37"); e("s_cbranch_scc1 L_fbA_loop")
    e("s_branch L_xlane_max")
    fbA = list(o); o = []; e = o.append
    e("L_fb_return:")
    for r in range(144): e(f"v_accvgpr_write_b32 a{r}, 0")
    e("s_mov_b32 s35, 0")
    for s in range(4): o.extend(nopfix(kv_stage_static(s)))
    e("s_branch L_att_start")
    fbA2 = list(o); o = []; e = o.append
    e("L_fbB:")
    e("s_mov_b32 s39, 1")
    for cb in range(NMAX): e(f"v_mov_b32 v{T+cb}, {NEG}"); e(f"v_mov_b32 v{BQ+8*cb+6}, 0"); e(f"v_mov_b32 v{BQ+8*cb+7}, 0")
    e("s_mov_b32 s34, 0")
    e("L_fbB_loop:")
    for f in range(2): e(f"buffer_load_dwordx4 {vr(BK+4*f,4)}, v{VL16}, s[44:47], s34 offen offset:{1024*f}")
    e("s_waitcnt vmcnt(0)")
    for cb in range(NMAX):
        d = vr(BS + 16*cb, 16)
        e(M32(d, vr(BK, 4), vr(BQ+8*cb, 4), "0")); e(M32(d, vr(BK+4, 4), vr(BQ+8*cb+4, 4), d))
    e("s_nop 11")
    for cb in range(NMAX):
        for k in range(0, 16, 2): e(f"v_max3_f32 v{T+cb}, v{T+cb}, v{BS+16*cb+k}, v{BS+16*cb+k+1}")
    e("s_add_u32 s34, s34, 4096"); e("s_cmp_lt_u32 s34, 262144"); e("s_cbranch_scc1 L_fbB_loop")
    e("s_branch L_B_xlane")
    fbB = list(o); o = []; e = o.append
    e("L_B_fbret:")
    o.extend(bd)
    e("s_branch L_B_start")
    fbB2 = list(o)

    code = headA + maxA + xl + mid + pre + top + loop + bot + post + lead0 + dA + dB + epi1 + pref + epi2 + bhead + bmax + bxl + bsel + bcode + epiB + fbA + fbA2 + fbB + fbB2
    code += ["L_k2_end:", "s_endpgm"]
    tailp = epi1 + pref + epi2 + bhead + bmax + bxl + bsel
    check(base_path + pre + top + loop + bot + top + loop + bot + post + dA + tailp + bpaths[0] + epiB, "k2 full A")
    check(base_path + pre + top + loop + bot + post + dB + epi1 + epi2, "k2 full B")
    check(base_path + lead0 + dA + epi1, "k2 i0 A"); check(base_path + lead0 + dB + epi1, "k2 i0 B")
    for bp in bpaths[1:]: check(tailp + bp + epiB, "k2 B")
    ia = headA.index("L_att_start:")
    check(epi1 + fbA + fbA[fbA.index("L_fbA_loop:"):] + xl + fbA2 + headA[ia:] + mid + pre, "k2 fbA")
    ib = bhead.index("L_B_start:")
    check(epiB[:epiB.index("s_cbranch_scc1 L_fbB")+1] + fbB + fbB[fbB.index("L_fbB_loop:"):] + bxl + fbB2 + bhead[ib:] + bsel + bpaths[0], "k2 fbB")
    if os.environ.get("DUMP"):
        open("k2_loop.txt", "w").write("\n".join(top + loop + bot))
        open("k2_bloop.txt", "w").write("\n".join(bcode))
    return code
```

```python
from asmlib import *
from common import *
VGPR = 416; ACC = 256; LDS = 122880

def gen_k3():
    o = []; e = o.append
    e("s_cmp_ge_u32 s2, 256"); e("s_cbranch_scc1 L_k3_end")
    e(f"s_load_dwordx2 s[4:5], s[0:1], {KA['out']}")
    e(f"s_load_dwordx2 s[6:7], s[0:1], {KA['ws']}")
    o.extend(stamp(0))
    e("v_lshrrev_b32 v1, 6, v0"); e("v_and_b32 v2, 63, v0")
    e("v_readfirstlane_b32 s30, v1")
    e("s_and_b32 s31, s2, 7"); e("s_lshr_b32 s33, s2, 3")
    e("s_lshr_b32 s28, s31, 1"); e("s_lshl_b32 s28, s28, 3"); e("s_and_b32 s34, s33, 7"); e("s_add_u32 s28, s28, s34")
    e("s_and_b32 s29, s31, 1"); e("s_lshl_b32 s29, s29, 2"); e("s_lshr_b32 s34, s33, 3"); e("s_add_u32 s29, s29, s34")
    e("v_lshlrev_b32 v3, 4, v2")
    for j in range(4):
        e(f"s_add_u32 s31, s30, {j}"); e("s_and_b32 s31, s31, 3"); e("s_mul_i32 s31, s31, 151552"); e(f"v_add_u32 v{4+j}, s31, v3")
    e("v_add_u32 v8, 4096, v3")
    e("s_lshl_b32 s32, s30, 15")
    e("s_mul_i32 s33, s30, 163840")
    e("s_mul_i32 s34, s30, 5120"); e("s_add_u32 s34, s34, 131072")
    e("s_mul_i32 s35, s30, 25600"); e("s_add_u32 s35, s35, 655360")
    e("s_waitcnt lgkmcnt(0)")
    e("s_mul_i32 s31, s28, 606208"); e(f"s_add_u32 s31, s31, {WS_CTX}")
    o.extend(srd(12, 6, "s31", WS_CTX + 128 * 148 * 1024))
    e("s_mul_i32 s31, s29, 757760"); e(f"s_add_u32 s31, s31, {WS_WOF}")
    o.extend(srd(16, 6, "s31", WS_WOF + 8 * 757760))
    RB = 16
    def ldX(k, j): return f"buffer_load_dwordx4 {vr(RB+36*k+4*j,4)}, v{4+j}, s[12:15], s32 offen"
    def ldW(k, nt): return (f"buffer_load_dwordx4 {vr(RB+36*k+16+4*nt,4)}, v3, s[16:19], s33 offen offset:{1024*nt}" if nt < 4
                            else f"buffer_load_dwordx4 {vr(RB+36*k+32,4)}, v8, s[16:19], s33 offen")
    adv = ["s_add_u32 s32, s32, 1024", "s_add_u32 s33, s33, 5120"]
    for k in range(4):
        o.extend([ldW(k, nt) for nt in range(5)] + [ldX(k, j) for j in range(4)] + adv)
    o.extend(srd(20, 4, None, SZ['out']))
    for r in range(160): e(f"v_accvgpr_write_b32 a{r}, 0")
    def step(k, accb, pref, wait):
        L = [f"s_waitcnt vmcnt({wait})"]
        for nt in range(5):
            for j in range(4):
                acc = ar(accb + (j*5+nt)*4, 4)
                L.append(M16(acc, vr(RB+36*k+16+4*nt, 4), vr(RB+36*k+4*j, 4), acc))
            if pref: L.append(ldW(k, nt))
        if pref: L += [ldX(k, j) for j in range(4)] + adv
        return L
    e("s_mov_b32 s36, 0")
    pre = list(o)
    top = [".p2align 6", "L_k3_loop:", "s_cmp_eq_u32 s36, 7", "s_cselect_b32 s32, s34, s32", "s_cselect_b32 s33, s35, s33"]
    loop = []
    for k in range(4): loop += step(k, 0, True, 27)
    bot = ["s_add_u32 s36, s36, 1", "s_cmp_lg_u32 s36, 8", "s_cbranch_scc1 L_k3_loop"]
    tail = step(0, 80, True, 27) + step(1, 80, False, 27) + step(2, 80, False, 18) + step(3, 80, False, 9) + step(0, 80, False, 0)
    tail += stamp(1)
    ep = []
    for j in range(1, 4):
        ep += [f"s_add_u32 s31, s30, {j}", "s_and_b32 s31, s31, 3", "s_mul_i32 s31, s31, 30720", f"s_add_u32 s31, s31, {(j-1)*10240}",
               f"v_add_u32 v{8+j}, s31, v3"]
    ep += ["s_mul_i32 s31, s30, 30720", "v_add_u32 v12, s31, v3", "s_nop 3"]
    for j in range(1, 4):
        for part in range(2):
            for nt in range(5):
                ep.append(f"ds_write_b128 v{8+j}, {ar(80*part+(j*5+nt)*4,4)} offset:{part*5120+nt*1024}")
    ep += ["s_lshl_b32 s31, s28, 6", "s_lshl_b32 s37, s30, 4", "s_add_u32 s31, s31, s37", "v_and_b32 v13, 15, v2", "v_add_u32 v13, s31, v13",
           "v_mul_u32_u24 v13, 2560, v13", "v_lshrrev_b32 v14, 4, v2", "v_mul_u32_u24 v14, 40, v14", "v_add_u32 v13, v13, v14",
           "s_mul_i32 s31, s29, 160", "v_add_u32 v13, s31, v13"]
    for r in range(40): ep.append(f"v_accvgpr_read_b32 v{16+r}, a{(r//20)*80 + r%20}")
    ep += ["s_waitcnt lgkmcnt(0)", "s_barrier"]
    for s in range(3):
        for q in range(10): ep.append(f"ds_read_b128 {vr(64+40*s+4*q,4)}, v12 offset:{s*10240+q*1024}")
    for s in range(3):
        ep.append(f"s_waitcnt lgkmcnt({min(15,10*(2-s))})" if s else "s_waitcnt lgkmcnt(15)")
        if s == 0: ep.append("s_waitcnt lgkmcnt(15)")
    ep = ep[:-4] + ["s_waitcnt lgkmcnt(0)"]
    for s in range(3):
        for r in range(40): ep.append(f"v_add_f32 v{16+r}, v{16+r}, v{64+40*s+r}")
    for r in range(20): ep.append(f"v_cvt_pk_bf16_f32 v{64+r}, v{16+2*r}, v{17+2*r}")
    for part in range(2):
        b = 64 + 10 * part
        ep += [f"buffer_store_dwordx4 {vr(b,4)}, v13, s[20:23], 0 offen offset:{1280*part}",
               f"buffer_store_dwordx4 {vr(b+4,4)}, v13, s[20:23], 0 offen offset:{1280*part+16}",
               f"buffer_store_dwordx2 {vr(b+8,2)}, v13, s[20:23], 0 offen offset:{1280*part+32}"]
    ep += stamp(2)
    if STAMP: ep += ["s_waitcnt vmcnt(0)"] + stamp(3) + stamp_flush(3, 4, 6, "s30", "k3")
    o.extend(top + loop + bot + tail + ep)
    o.append("L_k3_end:"); o.append("s_endpgm")
    check(pre + top + loop + bot + top + loop + bot + tail + ep, "k3")
    return o
```

```python
import sys, importlib
sys.path.insert(0, "gen")
from asmlib import *
import k1
NAME = "concat_heads__compressed_kv_cla__grouped_kv_mqa__prompt"
def build(path, which):
    ref = open(f"cdna_kernels/{NAME}.s.ref").read().splitlines()
    hdr = [l for l in ref if l.startswith(";") and "@launch" not in l and "Override" not in l and "grid=ceil" not in l and not l.startswith("    ")]
    hdr = hdr[:15]
    ks = []
    for w in which:
        ks.append(KERNELS[w]())
    out = list(hdr)
    for (name, body, vg, acc, grid, block, lds) in ks:
        out.append(f"; @launch kernel={name} grid=({grid},1,1) block=({block},1,1) lds={lds}")
    out += ['.amdgcn_target "amdgcn-amd-amdhsa--gfx950"', ".text"]
    descs = []
    for (name, body, vg, acc, grid, block, lds) in ks:
        t, d = kernel_text(name, body, vg, acc)
        out += t; descs += d
    out.append('.section .rodata,"a"')
    out += descs
    open(path, "w").write("\n".join(out) + "\n")
KERNELS = {
    "k1": lambda: ("kvproj_kernel", k1.gen_k1(), 512, 256, 256, 256, 131072),
}
try:
    import k0
    KERNELS["k0"] = lambda: ("prep_kernel", k0.gen_k0(), k0.VGPR, k0.ACC, k0.GRID, 256, k0.LDS)
except ImportError: pass
try:
    import k2
    KERNELS["k2"] = lambda: ("attn_kernel", k2.gen_k2(), 512, 256, 256, 256, 163840)
except ImportError: pass
try:
    import k3
    KERNELS["k3"] = lambda: ("oproj_kernel", k3.gen_k3(), k3.VGPR, k3.ACC, 256, 256, k3.LDS)
except ImportError: pass
import mega
KERNELS["mega"] = lambda: ("fused_kernel", mega.gen_mega(), 512, 256, 256, 256, 163840)
if __name__ == "__main__":
    build(sys.argv[1], sys.argv[2].split(","))
```

```python
import re

def vr(n, w=1):
    return f"v{n}" if w == 1 else f"v[{n}:{n+w-1}]"
def ar(n, w=1):
    return f"a{n}" if w == 1 else f"a[{n}:{n+w-1}]"
def sr(n, w=1):
    return f"s{n}" if w == 1 else f"s[{n}:{n+w-1}]"
def R(spec, w=1):
    return (vr if spec[0] == 'v' else ar)(spec[1], w)

_REG = re.compile(r"^(-|abs\()?([vas])(?:(\d+)|\[(\d+):(\d+)\])\)?$")
def regs_of(op):
    op = op.strip()
    if op in ("vcc",): return [("s", "vcc_lo"), ("s", "vcc_hi")]
    if op in ("exec",): return [("s", "exec_lo"), ("s", "exec_hi")]
    if op in ("m0", "vcc_lo", "vcc_hi", "exec_lo", "exec_hi"): return [("s", op)]
    m = _REG.match(op)
    if not m: return []
    k = m.group(2)
    if m.group(3) is not None: return [(k, int(m.group(3)))]
    return [(k, i) for i in range(int(m.group(4)), int(m.group(5)) + 1)]

TRANS = ("v_exp_f32", "v_log_f32", "v_rcp_f32", "v_rsq_f32", "v_sqrt_f32")
class Ins:
    __slots__ = ("text", "op", "kind", "rd", "wr", "passes", "srcc", "srcab", "states", "store_data", "lds_dma")
    def __init__(self, text):
        self.text = text
        t = text.split(";")[0].strip()
        parts = t.split(None, 1)
        op = parts[0]; self.op = op
        rest = parts[1] if len(parts) > 1 else ""
        ops = [x.strip() for x in re.split(r",\s*(?![^\[]*\])", rest)] if rest else []
        mods = ""
        if ops:
            last = ops[-1].split()
            if len(last) > 1:
                mods = " ".join(last[1:]); ops[-1] = last[0]
        self.rd = []; self.wr = []; self.passes = 0; self.srcc = []; self.srcab = []; self.states = 1
        self.store_data = []; self.lds_dma = False
        if op.endswith(":") or op.startswith("."):
            self.kind = "label"; self.states = 0; return
        if op.startswith("v_mfma"):
            self.kind = "mfma"
            self.passes = 8 if "32x32" in op else 4
            self.wr = regs_of(ops[0]); self.srcab = regs_of(ops[1]) + regs_of(ops[2]); self.srcc = regs_of(ops[3])
            self.rd = self.srcab + self.srcc
        elif op.startswith("ds_read"):
            self.kind = "ds"; self.wr = regs_of(ops[0]); self.rd = regs_of(ops[1])
        elif op.startswith("ds_write") or op.startswith("ds_add") or op.startswith("ds_or") or op.startswith("ds_max"):
            self.kind = "ds"; self.rd = sum((regs_of(o) for o in ops), [])
        elif op.startswith("ds_bpermute") or op.startswith("ds_swizzle") or op.startswith("ds_permute"):
            self.kind = "ds"; self.wr = regs_of(ops[0]); self.rd = sum((regs_of(o) for o in ops[1:]), [])
        elif op.startswith("buffer_load") or op.startswith("global_load"):
            self.kind = "vmem"
            if " lds" in (" " + mods) or "_lds_" in op:
                self.lds_dma = True
                self.rd = sum((regs_of(o) for o in ops), []) + [("s", "m0")]
            else:
                self.wr = regs_of(ops[0]); self.rd = sum((regs_of(o) for o in ops[1:]), [])
        elif op.startswith("buffer_store") or op.startswith("global_store"):
            self.kind = "vmem"; self.rd = sum((regs_of(o) for o in ops), [])
            d = regs_of(ops[0]) if op.startswith("buffer") else regs_of(ops[1])
            if len(d) >= 3: self.store_data = d
        elif op.startswith("buffer_atomic") or op.startswith("global_atomic"):
            self.kind = "vmem"; self.rd = sum((regs_of(o) for o in ops), [])
            if "sc0" in mods: self.wr = regs_of(ops[0])
        elif op.startswith("buffer_inv") or op.startswith("buffer_wbl2"):
            self.kind = "vmem"
        elif op.startswith("s_load") or op.startswith("s_memtime") or op.startswith("s_memrealtime"):
            self.kind = "smem"; self.wr = regs_of(ops[0]); self.rd = sum((regs_of(o) for o in ops[1:]), [])
        elif op == "s_waitcnt":
            self.kind = "wait"
        elif op == "s_nop":
            self.kind = "nop"; self.states = int(ops[0], 0) + 1
        elif op in ("s_barrier", "s_endpgm", "s_setprio", "s_sleep") or op.startswith("s_branch") or op.startswith("s_cbranch"):
            self.kind = "ctl"
            if "vcc" in op: self.rd = regs_of("vcc")
            if "exec" in op: self.rd = regs_of("exec")
        elif op.startswith("s_cmp") or op.startswith("s_bitcmp"):
            self.kind = "salu"; self.rd = sum((regs_of(o) for o in ops), [])
        elif op.startswith("s_"):
            self.kind = "salu"; self.wr = regs_of(ops[0]); self.rd = sum((regs_of(o) for o in ops[1:]), [])
            if "saveexec" in op: self.wr += regs_of("exec"); self.rd += regs_of("exec")
        elif op.startswith("v_"):
            self.kind = "valu"
            self.wr = regs_of(ops[0]); self.rd = sum((regs_of(o) for o in ops[1:]), [])
            if "permlane" in op and "swap" in op:
                self.wr += regs_of(ops[1]); self.rd += regs_of(ops[0])
            if op.startswith("v_fmac") or op.startswith("v_writelane"): self.rd += regs_of(ops[0])
            if op.startswith("v_add_co") or op.startswith("v_addc_co") or op.startswith("v_sub_co"):
                self.wr += regs_of(ops[1])
            if op.startswith("v_cndmask") and len(ops) == 3: self.rd += regs_of("vcc")
            if op.startswith("v_cmpx"): self.wr += regs_of("exec")
        else:
            raise ValueError("unknown op: " + text)

def base_op(op):
    return re.sub(r"_(e32|e64|dpp|sdwa)$", "", op)

def pair_need(p, c):
    crd = set(c.rd); cwr = set(c.wr); pw = set(p.wr)
    need = 0; why = ""
    def up(n, w):
        nonlocal need, why
        if n > need: need, why = n, w
    if p.kind == "valu":
        vw = {r for r in pw if r[0] in "va"}; sw = {r for r in pw if r[0] == "s"}
        if c.kind == "mfma" and vw & crd: up(2, "valu->mfma")
        if base_op(p.op) in TRANS and c.kind == "valu" and base_op(c.op) not in TRANS and vw & crd: up(1, "trans->valu")
        if c.kind == "vmem" and sw & crd: up(5, "valu sgpr->vmem")
        if c.kind == "valu" and sw & crd: up(4 if ("readlane" in c.op or "writelane" in c.op) else 2, "valu sgpr->valu")
        if c.kind == "salu" and sw & crd: up(1, "valu sgpr->salu(pad)")
        if c.kind == "ctl" and sw & crd: up(5, "valu vcc/exec->branch(pad)")
        if c.kind == "valu" and ("readfirstlane" in c.op or "readlane" in c.op) and vw & crd: up(1, "valu->readlane")
        if c.kind == "valu" and ("permlane" in c.op or "dpp" in c.text or "row_" in c.text) and vw & crd: up(2, "valu->permlane/dpp")
        if c.kind == "mfma" and ("s", "exec_lo") in sw: up(4, "valu exec->mfma")
    if p.kind == "salu":
        if ("s", "m0") in pw and c.lds_dma: up(1, "m0->dma")
    if p.kind == "mfma":
        big = 12 if p.passes == 8 else 8
        if c.kind == "mfma":
            if pw & set(c.srcab): up(big, "mfma D->mfma AB")
            elif pw & set(c.srcc):
                if not (p.wr == c.srcc and p.passes == c.passes): up(big - 2, "mfma D->mfma C partial")
            elif pw & cwr: up(big - 2, "mfma D->mfma D WAW(pad)")
        elif c.kind in ("valu", "vmem", "ds") and (pw & crd or pw & cwr): up(big, "mfma D->valu/mem")
        if c.kind == "valu" and set(p.srcc) & cwr: up(7 if p.passes == 8 else 3, "mfma C WAR")
    if p.kind == "vmem" and p.store_data and c.kind == "valu" and set(p.store_data) & cwr: up(2, "store data WAR")
    return need, why

def fix_hazards(prefix, seg):
    hist = [Ins(l) for l in prefix[-40:] if l.strip() and not l.strip().startswith(";")]
    out = []
    for l in seg:
        if not l.strip() or l.strip().startswith(";"):
            out.append(l); continue
        c = Ins(l)
        if c.kind not in ("label", "nop", "wait"):
            d = 0; short = 0
            for p in reversed(hist):
                if d >= 20: break
                n, _ = pair_need(p, c)
                short = max(short, n - d)
                d += p.states
            if short > 0:
                nop = f"s_nop {short - 1}"
                out.append(nop); hist.append(Ins(nop))
        out.append(l); hist.append(c)
    return out

def check(lines, name="", verbose=True):
    ins = [Ins(l) for l in lines if l.strip() and not l.strip().startswith(";")]
    probs = []
    for j, c in enumerate(ins):
        if c.kind in ("label", "nop", "wait"): continue
        d = 0; i = j - 1
        while i >= 0 and d < 20:
            p = ins[i]
            need, why = pair_need(p, c)
            if need > d: probs.append(f"{name}: hazard {why}: need {need} have {d}: [{p.text}] -> [{c.text}]")
            d += p.states; i -= 1
    vm = []; lg = []
    for j, c in enumerate(ins):
        if c.kind == "wait":
            m = re.search(r"vmcnt\((\d+)\)", c.text)
            if m:
                k = int(m.group(1)); vm = vm[len(vm) - k:] if k < len(vm) else vm
                if k == 0: vm = []
            m = re.search(r"lgkmcnt\((\d+)\)", c.text)
            if m:
                k = int(m.group(1))
                if k == 0: lg = []
                elif any(e[2] == "smem" for e in lg): probs.append(f"{name}: counted lgkmcnt with smem outstanding: {c.text}")
                else: lg = lg[len(lg) - k:] if k < len(lg) else lg
            continue
        touched = set(c.rd) | set(c.wr)
        for q in (vm, lg):
            for (w, txt, k) in q:
                if w & touched:
                    probs.append(f"{name}: use of in-flight load dest: [{txt}] -> [{c.text}]")
        if c.kind == "vmem": vm.append((set(c.wr), c.text, "vmem"))
        if c.kind == "ds": lg.append((set(c.wr), c.text, "ds"))
        if c.kind == "smem": lg.append((set(c.wr), c.text, "smem"))
        if len(vm) > 63: probs.append(f"{name}: more than 63 vmem outstanding at {c.text}")
        if len(lg) > 15 and c.kind == "ds": pass
    if verbose:
        seen = set()
        for p in probs:
            if p not in seen:
                if len(seen) < 12: print(p)
                seen.add(p)
        if len(seen) >= 12: print(f"{name}: ... {len(seen)} distinct problems")
    return probs

def interleave(mf, fill, budget, cost):
    out = []; k = 0
    for g, m in enumerate(mf):
        out.append(m)
        used = 0
        while k < len(fill) and fill[k][0] <= g:
            c = cost(fill[k][1])
            if used + c > budget and used > 0: break
            out.append(fill[k][1]); used += c; k += 1
    out += [f[1] for f in fill[k:]]
    return out

def std_cost(s):
    op = s.split()[0]
    if base_op(op) in TRANS: return 8
    if op == "s_nop": return 4 * (int(s.split()[1]) + 1)
    return 4

def kernel_text(name, body, vgpr, accum, sgpr=102):
    t = [f".globl {name}", ".p2align 8", f".type {name},@function", f"{name}:"]
    t += [("" if l.endswith(":") else "  ") + l for l in body]
    d = [".p2align 6", f".amdhsa_kernel {name}", f"  .amdhsa_next_free_vgpr {vgpr}", f"  .amdhsa_next_free_sgpr {sgpr}",
         f"  .amdhsa_accum_offset {accum}", "  .amdhsa_group_segment_fixed_size 0", "  .amdhsa_kernarg_size 112",
         "  .amdhsa_user_sgpr_count 2", "  .amdhsa_user_sgpr_kernarg_segment_ptr 1", "  .amdhsa_system_sgpr_workgroup_id_x 1",
         ".end_amdhsa_kernel"]
    return t, d

def insert_lgkm_waits(prefix, seg, recent=140):
    lg = []; now = 0
    def do_wait(k):
        nonlocal lg
        lg = [] if k == 0 else (lg[len(lg) - k:] if k < len(lg) else lg)
    def feed(l, out):
        nonlocal now
        if not l.strip() or l.strip().startswith(";"):
            if out is not None: out.append(l)
            return
        c = Ins(l)
        if c.kind == "wait":
            m = re.search(r"lgkmcnt\((\d+)\)", l)
            if m: do_wait(int(m.group(1)))
        elif c.kind != "label":
            touched = set(c.rd) | set(c.wr)
            last = -1
            for idx, w in enumerate(lg):
                if w[0] & touched: last = idx
            if last >= 0 and out is not None:
                k = min(15, len(lg) - 1 - last, sum(1 for w in lg if now - w[1] < recent))
                out.append(f"s_waitcnt lgkmcnt({k})"); do_wait(k)
            if c.kind in ("ds", "smem"): lg.append((set(c.wr), now))
            now += 8 if (c.kind == "mfma" or base_op(c.op) in TRANS) else 4
        if out is not None: out.append(l)
    for l in prefix: feed(l, None)
    out = []
    for l in seg: feed(l, out)
    return out

def fin(prefix, seg):
    seg = insert_lgkm_waits(prefix, seg)
    return fix_hazards(prefix, seg)

def interleave2(mf, classes, budget, cost):
    out = []; idx = [0] * len(classes)
    for g, m in enumerate(mf):
        out.append(m); used = 0
        while True:
            pick = None
            for c, L in enumerate(classes):
                if idx[c] < len(L) and L[idx[c]][0] <= g: pick = c; break
            if pick is None: break
            k = cost(classes[pick][idx[pick]][1])
            if used + k > budget and used > 0: break
            out.append(classes[pick][idx[pick]][1]); idx[pick] += 1; used += k
    for c, L in enumerate(classes): out += [x[1] for x in L[idx[c]:]]
    return out
```

```python
WS_KV   = 0
WS_CTX  = 32 << 20
WS_WOF  = 52 << 20
WS_QB   = 59 << 20
WS_KVB  = 62 << 20
WS_FLAG = 63 << 20
WS_XCH  = 64 << 20
FL_CTX, FL_OB, FL_X, FL_P0 = 4096, 8192, 16384, 28672
WS_SIZE = 268435456
KA = dict(A_x=0, A_ckv=8, A_wq=16, A_wuk=24, A_wuv=32, A_wo=40, B_x=48, B_wq=56, B_wk=64, B_wv=72, B_wo=80, out=88, dbg=96, ws=104)
SZ = dict(A_x=2048*640*2, A_ckv=2048*512*2, A_wq=640*4096*2, A_wuk=512*4096*2, A_wuv=512*4096*2, A_wo=4096*640*2,
          B_x=2048*640*2, B_wq=640*640*2, B_wk=640*20*2, B_wv=640*20*2, B_wo=640*640*2, out=2048*1280*2)
import math
LOG2E = 1.4426950408889634
import struct
def f2u(x): return struct.unpack("<I", struct.pack("<f", x))[0]
def M16(d, a, b, c): return f"v_mfma_f32_16x16x32_bf16 {d}, {a}, {b}, {c}"
def M32(d, a, b, c): return f"v_mfma_f32_32x32x16_bf16 {d}, {a}, {b}, {c}"

def srd(dst, ptr, off_sreg, total, tmp=None):
    o = []
    if off_sreg is None or off_sreg == 0:
        o += [f"s_mov_b32 s{dst}, s{ptr}", f"s_and_b32 s{dst+1}, s{ptr+1}, 0xffff", f"s_mov_b32 s{dst+2}, {total}"]
    elif isinstance(off_sreg, int):
        o += [f"s_add_u32 s{dst}, s{ptr}, {off_sreg}", f"s_addc_u32 s{dst+1}, s{ptr+1}, 0", f"s_and_b32 s{dst+1}, s{dst+1}, 0xffff",
              f"s_mov_b32 s{dst+2}, {total - off_sreg}"]
    else:
        o += [f"s_add_u32 s{dst}, s{ptr}, {off_sreg}", f"s_addc_u32 s{dst+1}, s{ptr+1}, 0", f"s_and_b32 s{dst+1}, s{dst+1}, 0xffff",
              f"s_sub_u32 s{dst+2}, {total}, {off_sreg}"]
    o.append(f"s_mov_b32 s{dst+3}, 0x20000")
    return o

import os
STAMP = int(os.environ.get("STAMP", "0"))
WS_STAMP = 96 << 20
def stamp(i):
    if not STAMP: return []
    return [f"s_memrealtime s[{70+2*i}:{71+2*i}]", "s_memtime s[68:69]", "s_waitcnt lgkmcnt(0)", f"s_mov_b32 s{71+2*i}, s68"]
def stamp_flush(kidx, n, ws_lo, wave_sreg, tag):
    if not STAMP: return []
    o = [f"s_cmp_lg_u32 {wave_sreg}, 0", f"s_cbranch_scc1 L_st_{tag}"]
    o += srd(96, ws_lo, WS_STAMP + kidx * 512 * 128, WS_SIZE)
    o += ["s_lshl_b32 s68, s2, 7", "v_mov_b32 v1, s68"]
    for i in range(n):
        o += [f"v_mov_b32 v2, s{70+2*i}", f"buffer_store_dword v2, v1, s[96:99], 0 offen offset:{4*i}"]
        o += [f"v_mov_b32 v3, s{71+2*i}", f"buffer_store_dword v3, v1, s[96:99], 0 offen offset:{4*i+64}"]
    o += ["s_waitcnt vmcnt(0)", f"L_st_{tag}:"]
    return o
```

```python
from asmlib import *
from common import *
import os
VGPR = 416; ACC = 256; LDS = 122880

def gen_k3():
    o = []; e = o.append
    e("s_cmp_ge_u32 s2, 256"); e("s_cbranch_scc1 L_k3_end")
    e(f"s_load_dwordx2 s[4:5], s[0:1], {KA['out']}")
    e(f"s_load_dwordx2 s[6:7], s[0:1], {KA['ws']}")
    o.extend(stamp(0))
    e("v_lshrrev_b32 v1, 6, v0"); e("v_and_b32 v2, 63, v0")
    e("v_readfirstlane_b32 s30, v1")
    cb_ = int(os.environ.get("K3MAP", "2"))
    e("s_and_b32 s31, s2, 7"); e("s_lshr_b32 s33, s2, 3")
    e(f"s_lshr_b32 s28, s31, {3-cb_}"); e(f"s_lshl_b32 s28, s28, {5-cb_}"); e(f"s_and_b32 s34, s33, {(32>>cb_)-1}"); e("s_add_u32 s28, s28, s34")
    e(f"s_and_b32 s29, s31, {(8>>cb_)-1}"); e(f"s_lshl_b32 s29, s29, {cb_}"); e(f"s_lshr_b32 s34, s33, {5-cb_}"); e("s_add_u32 s29, s29, s34")
    e("v_lshlrev_b32 v3, 4, v2")
    for j in range(4):
        e(f"s_add_u32 s31, s30, {j}"); e("s_and_b32 s31, s31, 3"); e("s_mul_i32 s31, s31, 151552"); e(f"v_add_u32 v{4+j}, s31, v3")
    e("v_add_u32 v8, 4096, v3")
    e("s_lshl_b32 s32, s30, 15")
    e("s_mul_i32 s33, s30, 163840")
    e("s_mul_i32 s34, s30, 5120"); e("s_add_u32 s34, s34, 131072")
    e("s_mul_i32 s35, s30, 25600"); e("s_add_u32 s35, s35, 655360")
    e("s_waitcnt lgkmcnt(0)")
    e("s_mul_i32 s31, s28, 606208"); e(f"s_add_u32 s31, s31, {WS_CTX}")
    o.extend(srd(12, 6, "s31", WS_CTX + 128 * 148 * 1024))
    e("s_mul_i32 s31, s29, 757760"); e(f"s_add_u32 s31, s31, {WS_WOF}")
    o.extend(srd(16, 6, "s31", WS_WOF + 8 * 757760))
    RB = 10
    def ldX(k, j): return f"buffer_load_dwordx4 {vr(RB+36*k+4*j,4)}, v{4+j}, s[12:15], s32 offen"
    def ldW(k, nt): return (f"buffer_load_dwordx4 {vr(RB+36*k+16+4*nt,4)}, v3, s[16:19], s33 offen offset:{1024*nt}" if nt < 4
                            else f"buffer_load_dwordx4 {vr(RB+36*k+32,4)}, v8, s[16:19], s33 offen")
    adv = ["s_add_u32 s32, s32, 1024", "s_add_u32 s33, s33, 5120"]
    D = int(os.environ.get("K3D", "6"))
    def setp(t):
        if t == 32: return ["s_mov_b32 s32, s34", "s_mov_b32 s33, s35"]
        return []
    for k in range(D):
        o.extend([ldW(k, nt) for nt in range(5)] + [ldX(k, j) for j in range(4)] + adv)
    o.extend(srd(20, 4, None, SZ['out']))
    for r in range(160): e(f"v_accvgpr_write_b32 a{r}, 0")
    def step(k, accb, pref, wait):
        L = [f"s_waitcnt vmcnt({wait})"]
        for nt in range(5):
            for j in range(4):
                acc = ar(accb + (j*5+nt)*4, 4)
                if not os.environ.get("K3NOMF"): L.append(M16(acc, vr(RB+36*k+16+4*nt, 4), vr(RB+36*k+4*j, 4), acc))
            if pref: L.append(ldW(k, nt))
        if pref: L += [ldX(k, j) for j in range(4)] + adv
        return L
    pre = list(o)
    top = []; loop = []; bot = []
    tail = []
    for t in range(37):
        tail += setp(t + D)
        tail += step(t % D, 0 if t < 32 else 80, t + D < 37, 9 * min(D - 1, 36 - t))
    tail += stamp(1)
    ep = []
    for j in range(1, 4):
        ep += [f"s_add_u32 s31, s30, {j}", "s_and_b32 s31, s31, 3", "s_mul_i32 s31, s31, 30720", f"s_add_u32 s31, s31, {(j-1)*10240}",
               f"v_add_u32 v{8+j}, s31, v3"]
    ep += ["s_mul_i32 s31, s30, 30720", "v_add_u32 v12, s31, v3", "s_nop 3"]
    for j in range(1, 4):
        for part in range(2):
            for nt in range(5):
                ep.append(f"ds_write_b128 v{8+j}, {ar(80*part+(j*5+nt)*4,4)} offset:{part*5120+nt*1024}")
    ep += ["s_lshl_b32 s31, s28, 6", "s_lshl_b32 s37, s30, 4", "s_add_u32 s31, s31, s37", "v_and_b32 v13, 15, v2", "v_add_u32 v13, s31, v13",
           "v_mul_u32_u24 v13, 2560, v13", "v_lshrrev_b32 v14, 4, v2", "v_mul_u32_u24 v14, 40, v14", "v_add_u32 v13, v13, v14",
           "s_mul_i32 s31, s29, 160", "v_add_u32 v13, s31, v13"]
    for r in range(40): ep.append(f"v_accvgpr_read_b32 v{16+r}, a{(r//20)*80 + r%20}")
    ep += ["s_waitcnt lgkmcnt(0)", "s_barrier"]
    for s in range(3):
        for q in range(10): ep.append(f"ds_read_b128 {vr(64+40*s+4*q,4)}, v12 offset:{s*10240+q*1024}")
    for s in range(3):
        ep.append(f"s_waitcnt lgkmcnt({min(15,10*(2-s))})" if s else "s_waitcnt lgkmcnt(15)")
        if s == 0: ep.append("s_waitcnt lgkmcnt(15)")
    ep = ep[:-4] + ["s_waitcnt lgkmcnt(0)"]
    for s in range(3):
        for r in range(40): ep.append(f"v_add_f32 v{16+r}, v{16+r}, v{64+40*s+r}")
    for r in range(20): ep.append(f"v_cvt_pk_bf16_f32 v{64+r}, v{16+2*r}, v{17+2*r}")
    for part in range(2):
        b = 64 + 10 * part
        ep += [f"buffer_store_dwordx4 {vr(b,4)}, v13, s[20:23], 0 offen offset:{1280*part}",
               f"buffer_store_dwordx4 {vr(b+4,4)}, v13, s[20:23], 0 offen offset:{1280*part+16}",
               f"buffer_store_dwordx2 {vr(b+8,2)}, v13, s[20:23], 0 offen offset:{1280*part+32}"]
    ep += stamp(2)
    if STAMP: ep += ["s_waitcnt vmcnt(0)"] + stamp(3) + stamp_flush(3, 4, 6, "s30", "k3")
    o.extend(top + loop + bot + tail + ep)
    o.append("L_k3_end:"); o.append("s_endpgm")
    check(pre + top + loop + bot + top + loop + bot + tail + ep, "k3")
    return o
```

```python
from asmlib import *
from common import *
import os
NB = [int(c) for c in os.environ.get("NB", "44322100")]
assert sum(NB) == 16
NMAX = max(NB)
NEG = f2u(-1e30)
SC = " sc1"
SPIN = 1 << 22
sH, sI, sW, sW8K = 28, 29, 30, 36
KV = "s[8:11]"; DBG = "s[24:27]"
QR = 64; KB = 128; SR = 192; PR = 208; NM = 216; ONES = 232; CL = 32
VL16 = 236; VL16H = 237; VL16HH = 239; VDMA = 238; VRD = 31; T = 240
AO = 0; AL = 128; AV = 144
VOTE = 131072

QST = os.environ.get("QST", "")
_stamp = stamp
def stamp(i):
    if QST and i > 0: return []
    return _stamp(i)
def qstamp(tag, i):
    return _stamp(i) if QST == tag else []
def nopfix(L):
    r = []
    for i, x in enumerate(L):
        r.append(x)
        if " m0," in x and i + 1 < len(L) and " lds" in L[i + 1]: r.append("s_nop 0")
    return r

XSL = [0, 32768, 65536]
WSL = [131072, 147456, 98304]
XF = 8
WFB = 64; WFN = 12
ET = 112
QXD, QWD, QXR, QWR, QL16, QFL = 40, 42, 44, 48, 56, 57
TA = 192
def kv_dma(k): return f"buffer_load_dwordx4 v{VDMA}, {KV}, s35 offen offset:{1024*(k&3)}{SC} lds"
def kv_stage_static(slot):
    L = []
    for k in range(8):
        if k % 4 == 0: L.append(f"s_add_u32 m0, s{sW8K}, {slot*32768 + (k//4)*4096}")
        L.append(kv_dma(k))
        if k % 4 == 3: L.append("s_add_u32 s35, s35, 4096" if k == 3 else "s_add_u32 s35, s35, 28672")
    return L
def q_dma(s):
    k = s % 3; L = []
    for half in range(2):
        L.append(f"s_add_u32 m0, s{sW8K}, {XSL[k] + 4096*half}")
        for j in range(4):
            if j % 2 == 0: L.append(f"s_mov_b32 s32, {s*128 + 40960*half + 9216*j}")
            L.append(f"buffer_load_dwordx4 v{QXD+(j&1)}, s[64:67], s32 offen offset:{1024*j} lds")
    L.append(f"s_add_u32 m0, s39, {WSL[k]}")
    for j in range(4):
        L.append(f"s_mov_b32 s34, {s*524288 + 31744*j}")
        L.append(f"buffer_load_dwordx4 v{QWD+(j>>1)}, s[60:63], s34 offen offset:{1024*j} lds")
    return L
def q_xr(s, ks, b, cb):
    return f"ds_read_b128 {vr(XF+16*b+4*cb,4)}, v{QXR+2*(cb&1)+ks} offset:{(XSL[s%3] & 65535) + (cb>>1)*16384}"
def q_wslot(t, dt): return WFB + 4 * ((8 * t + dt) % WFN)
def q_wr(t, dt):
    s, ks = divmod(t, 2)
    return [f"ds_read_b64_tr_b16 {vr(q_wslot(t,dt)+2*p,2)}, v{QWR+dt} offset:{WSL[s%3]-98304+8192*ks+1024*p}" for p in range(2)]
TOUCH = [f"v_add_u32 v{TA+2}, v{TA+2}, v{TA+3}", f"v_med3_i32 v{TA+5}, v{TA+2}, 0, v{TA+4}", f"v_add_co_u32 v{TA+6}, vcc, v{TA}, v{TA+5}",
         "NOP2", f"v_addc_co_u32 v{TA+7}, vcc, 0, v{TA+1}, vcc", f"global_load_dword v{TA+8}, {vr(TA+6,2)}, off"]

def phase12():
    o = []; e = o.append
    e("s_cmp_ge_u32 s2, 256"); e("s_cbranch_scc1 L_end")
    e(f"s_load_dwordx4 s[56:59], s[0:1], {KA['A_x']}")
    e(f"s_load_dwordx2 s[42:43], s[0:1], {KA['A_wq']}")
    e(f"s_load_dwordx4 s[44:47], s[0:1], {KA['A_wuk']}")
    e(f"s_load_dwordx4 s[4:7], s[0:1], {KA['dbg']}")
    o.extend(stamp(0))
    e("v_lshrrev_b32 v1, 6, v0"); e("v_and_b32 v2, 63, v0")
    e(f"v_readfirstlane_b32 s{sW}, v1")
    e(f"s_and_b32 s{sH}, s2, 7"); e(f"s_lshl_b32 s{sH}, s{sH}, 2"); e("s_lshr_b32 s31, s2, 3"); e("s_and_b32 s31, s31, 3")
    e(f"s_add_u32 s{sH}, s{sH}, s31"); e(f"s_lshr_b32 s{sI}, s2, 5")
    e("v_lshrrev_b32 v3, 3, v2"); e("v_and_b32 v4, 7, v2"); e("v_lshrrev_b32 v5, 4, v2")
    e(f"s_lshl_b32 s31, s{sW}, 16")
    e("v_lshlrev_b32 v3, 10, v3"); e("v_add_u32 v3, s31, v3")
    e("v_xor_b32 v6, v4, v5"); e("v_lshlrev_b32 v6, 4, v6"); e("v_xor_b32 v7, 64, v6")
    for j in range(4):
        e(f"v_add_u32 v{8+j}, v3, v{6+(j&1)}")
        if j: e(f"v_add_u32 v{8+j}, {7168*j}, v{8+j}")
    e("v_and_b32 v4, 15, v2")
    e(f"s_lshl_b32 s31, s{sW}, 17")
    e("v_lshlrev_b32 v3, 13, v5"); e("v_add_u32 v3, s31, v3")
    e("v_lshlrev_b32 v6, 1, v5"); e("v_xor_b32 v6, v4, v6"); e("v_lshlrev_b32 v6, 4, v6"); e("v_xor_b32 v7, 128, v6")
    for j in range(4):
        e(f"v_add_u32 v{12+j}, v3, v{6+(j>>1)}")
        if j: e(f"v_add_u32 v{12+j}, {31744*j}, v{12+j}")
    e(f"s_lshl_b32 s{sW8K}, s{sW}, 13"); e(f"s_add_u32 s35, s{sW8K}, 4096")
    e(f"s_lshl_b32 s39, s{sW}, 12"); e("s_add_u32 s38, s39, 49152"); e("s_add_u32 s37, s39, 32768")
    e("s_waitcnt lgkmcnt(0)")
    e(f"s_lshl_b32 s31, s{sI}, 18")
    o.extend(srd(12, 58, "s31", SZ['A_ckv']))
    e(f"s_lshl_b32 s3, s{sH}, 8")
    o.extend(srd(16, 44, "s3", SZ['A_wuk']))
    o.extend(srd(20, 46, "s3", SZ['A_wuv']))
    def dma_list(slot):
        L = []
        for half in range(2):
            L.append(f"s_add_u32 m0, s{(sW8K, 35)[half]}, {slot*65536}")
            for j in range(4): L.append(f"buffer_load_dwordx4 v{8+j}, s[12:15], s{32+half} offen offset:{1024*j} lds")
        for kv in range(2):
            L.append(f"s_add_u32 m0, s{37+kv}, {slot*65536}")
            for j in range(4): L.append(f"buffer_load_dwordx4 v{12+j}, s[{16+4*kv}:{19+4*kv}], s34 offen offset:{1024*j} lds")
        return L
    adv = ["s_add_u32 s32, s32, 128", "s_add_u32 s33, s33, 128", "s_add_u32 s34, s34, 524288"]
    e("s_mov_b32 s32, 0"); e("s_mov_b32 s33, 32768"); e("s_mov_b32 s34, 0")
    o.extend(nopfix(dma_list(0))); o.extend(adv)
    o.extend(nopfix(dma_list(1))); o.extend(adv)
    o.extend(srd(24, 4, None, 256))
    e(f"s_cmp_lg_u32 s{sW}, 0"); e("s_cbranch_scc1 L_nononce")
    e("s_memrealtime s[40:41]"); e("v_mov_b32 v61, 0"); e("s_waitcnt lgkmcnt(0)"); e("s_and_b32 s100, s40, 0xfffffff0"); e("s_or_b32 s100, s100, 8")
    e("v_mov_b32 v60, s100"); e("s_mov_b64 exec, 1")
    e(f"buffer_atomic_cmpswap v[60:61], v61, {DBG}, 0 offen sc0{SC}"); e("s_mov_b64 exec, -1")
    e("L_nononce:")
    e(f"s_and_b32 s31, s{sH}, 3"); e("s_lshl_b32 s31, s31, 6"); e(f"s_lshl_b32 s40, s{sW}, 4"); e("s_add_u32 s31, s31, s40")
    e(f"s_lshl_b32 s40, s{sI}, 8"); e("s_add_u32 s31, s31, s40")
    e("v_and_b32 v6, 1, v2"); e("v_lshlrev_b32 v6, 7, v6")
    def lanes(lo, hi): return f"s_mov_b64 exec, {hex(((1 << hi) - 1) ^ ((1 << lo) - 1))}"
    def grp(mask_lo, mask_hi, ptr, offreg, start, stride, mx):
        L = [f"s_mov_b32 exec_lo, {hex(mask_lo)}", f"s_mov_b32 exec_hi, {hex(mask_hi)}", f"v_mov_b32 v{TA+1}, s{ptr+1}",
             f"v_add_co_u32 v{TA}, vcc, s{ptr}, v{offreg}", f"v_mov_b32 v{TA+2}, {start & 0xffffffff}", f"v_mov_b32 v{TA+3}, {stride}",
             f"v_addc_co_u32 v{TA+1}, vcc, 0, v{TA+1}, vcc", f"v_mov_b32 v{TA+4}, {mx}"]
        return L
    e("v_add_u32 v3, s31, v2"); e("v_lshlrev_b32 v3, 10, v3")
    TM = int(os.environ.get('TM', '3')); LA = int(os.environ.get('LA', '1'))
    o.extend(grp(0xffff, 0, 58, 3, 128*LA, 128, 896 if TM & 1 else 0))
    e("s_mov_b64 exec, -1")
    e(f"s_lshl_b32 s40, s{sI}, 3"); e(f"s_lshl_b32 s41, s{sW}, 1"); e("s_add_u32 s40, s40, s41"); e("v_bfe_u32 v3, v2, 1, 1"); e("v_add_u32 v3, s40, v3")
    e("v_lshlrev_b32 v3, 13, v3"); e("v_add3_u32 v3, v3, v6, s3")
    o.extend(grp(0xf0000, 0, 44, 3, 524288*LA, 524288, 7*524288 if TM & 1 else 0)); o.extend(grp(0xf00000, 0, 46, 3, 524288*LA, 524288, 7*524288 if TM & 1 else 0))
    e("s_mov_b64 exec, -1")
    e(f"s_lshl_b32 s31, s{sI}, 8"); e(f"s_lshl_b32 s40, s{sH}, 3"); e("s_add_u32 s31, s31, s40"); e("s_add_u32 s31, s31, s41")
    e("v_bfe_u32 v3, v2, 1, 1"); e("v_add_u32 v3, s31, v3"); e("v_mul_u32_u24 v3, 1280, v3"); e("v_add_u32 v3, v3, v6")
    o.extend(grp(0xff000000, 0xffffff, 56, 3, -3*256, 256, 4*256 if TM & 2 else 0))
    e("s_mov_b64 exec, -1")
    e(f"s_mul_i32 s40, s{sI}, 80"); e(f"s_mul_i32 s41, s{sW}, 20"); e("s_add_u32 s40, s40, s41"); e("v_bfe_u32 v3, v2, 1, 2"); e("v_add_u32 v3, s40, v3")
    e("v_lshlrev_b32 v3, 13, v3"); e("v_add3_u32 v3, v3, v6, s3")
    o.extend(grp(0, 0xff000000, 42, 3, -3*32768, 32768, 4*32768 if TM & 2 else 0))
    e("s_mov_b64 exec, -1")
    o.extend([x if x != "NOP2" else "s_nop 1" for x in TOUCH])
    o.extend(srd(24, 6, WS_FLAG, WS_FLAG + 65536))
    e("s_getreg_b32 s101, hwreg(HW_REG_XCC_ID, 0, 3)")
    e(f"s_lshl_b32 s31, s{sH}, 7"); e("v_and_b32 v3, 7, v2"); e("v_lshlrev_b32 v3, 2, v3"); e(f"v_add_u32 v{QFL}, s31, v3")
    e(f"s_mul_i32 s31, s{sI}, 327680")
    o.extend(srd(64, 56, "s31", SZ['A_x']))
    o.extend(srd(60, 42, "s3", SZ['A_wq']))
    e(f"s_lshl_b32 s31, s{sH}, 20")
    o.extend(srd(8, 6, "s31", 32 << 20))
    e(f"s_and_b32 s40, s{sW}, 1"); e(f"s_lshr_b32 s41, s{sW}, 1")
    e("s_lshl_b32 s31, s40, 13")
    e("v_lshlrev_b32 v3, 7, v4"); e("v_add_u32 v3, s31, v3")
    e("v_lshrrev_b32 v6, 1, v4"); e("v_xor_b32 v6, v5, v6"); e("v_lshlrev_b32 v6, 4, v6")
    e("v_add_u32 v16, v3, v6"); e("v_xor_b32 v17, 64, v16")
    e("v_add_u32 v18, 0x10000, v16"); e("v_add_u32 v19, 0x10000, v17")
    e("v_lshrrev_b32 v3, 2, v2"); e("v_and_b32 v3, 3, v3")
    e("v_and_b32 v6, 1, v5"); e("v_lshlrev_b32 v6, 2, v6"); e("v_or_b32 v6, v6, v3")
    e("v_lshlrev_b32 v7, 3, v5"); e("v_add_u32 v7, v7, v3"); e("v_lshlrev_b32 v7, 8, v7")
    e("v_and_b32 v3, 3, v2"); e("v_lshlrev_b32 v3, 3, v3"); e("v_add_u32 v7, v7, v3")
    e("v_lshlrev_b32 v6, 5, v6")
    for dt in range(8):
        e(f"v_xor_b32 v3, {dt*32}, v6"); e(f"v_add_u32 v{QWR+dt}, v7, v3"); e(f"v_add_u32 v{QWR+dt}, 98304, v{QWR+dt}")
    e("s_lshl_b32 s31, s41, 7"); e("v_xor_b32 v6, s31, v6")
    for q in range(4):
        e(f"v_xor_b32 v3, {q*32}, v6"); e(f"v_add_u32 v{20+q}, v7, v3"); e(f"v_add_u32 v{20+q}, 32768, v{20+q}"); e(f"v_add_u32 v{24+q}, 0x10000, v{20+q}")
    e("v_lshrrev_b32 v3, 3, v2"); e("v_and_b32 v6, 7, v2"); e(f"s_mul_i32 s31, s{sW}, 81920")
    e("v_mul_u32_u24 v3, 1280, v3"); e("v_add_u32 v3, s31, v3"); e("v_xor_b32 v6, v6, v5"); e("v_lshlrev_b32 v6, 4, v6")
    e(f"v_add_u32 v{QXD}, v3, v6"); e("v_xor_b32 v6, 64, v6"); e(f"v_add_u32 v{QXD+1}, v3, v6"); e(f"v_add_u32 v{QXD+1}, 9216, v{QXD+1}")
    e(f"v_mov_b32 v{QWD}, v12"); e(f"v_subrev_u32 v{QWD+1}, 63488, v14")
    e("v_lshrrev_b32 v6, 1, v4"); e("v_xor_b32 v6, v5, v6"); e("v_lshlrev_b32 v6, 4, v6"); e("v_lshlrev_b32 v3, 7, v4"); e("v_add_u32 v3, v3, v6")
    e(f"s_lshl_b32 s31, s{sW}, 11"); e(f"v_add_u32 v{QXR}, s31, v3"); e(f"v_xor_b32 v{QXR+1}, 64, v{QXR}")
    e("s_sub_u32 s31, 14336, s31"); e(f"v_add_u32 v{QXR+2}, s31, v3"); e(f"v_xor_b32 v{QXR+3}, 64, v{QXR+2}")
    e(f"v_lshlrev_b32 v{QL16}, 4, v2")
    e("s_lshl_b32 s31, s41, 11"); e("s_lshl_b32 s43, s40, 15"); e("s_add_u32 s43, s43, s31")
    e("s_add_u32 s31, s43, 32768"); e(f"v_add_u32 v58, s31, v{QL16}"); e("v_add_u32 v59, 0x10000, v58")
    e(f"s_lshl_b32 s31, s{sI}, 17"); e("s_add_u32 s43, s43, s31")
    e("s_lshl_b32 s31, s41, 11"); e("v_add_u32 v62, s31, v58"); e("v_add_u32 v63, s31, v59"); e("s_add_u32 s42, s43, s31")
    e(f"s_mov_b32 s44, {f2u(LOG2E / 128 ** 0.5)}")
    for r in range(256): e(f"v_accvgpr_write_b32 a{r}, 0")
    e("v_lshlrev_b32 v3, 2, v5")
    for r in range(4):
        e(f"v_add_u32 v6, {r}, v3"); e(f"v_cmp_gt_u32 {sr(48+2*r,2)}, v6, v4")
    def reads(slot, ks, buf):
        L = []; base = 64 + 64 * buf
        for t in range(8):
            L.append(f"ds_read_b128 {vr(base+4*t,4)}, v{16+2*slot+ks} offset:{2048*t + (8192 if t >= 4 else 0)}")
            for part in range(2):
                L.append(f"ds_read_b64_tr_b16 {vr(base+32+4*t+2*part,2)}, v{20+4*slot+(t&3)} offset:{16384*(t>>2)+8192*ks+1024*part}")
        return L
    e("s_waitcnt vmcnt(17)"); e("s_barrier")
    o.extend(stamp(1))
    o.extend(reads(0, 0, 0))
    e("s_mov_b32 s45, 0")
    pre = o
    def mf(buf):
        base = 64 + 64 * buf; L = []
        order = sorted(((dt, kt) for dt in range(8) for kt in range(8)), key=lambda p: (max(p), p))
        for (dt, kt) in order:
            acc = ar((dt*8+kt)*4, 4); c = vr(base+4*kt, 4); w = vr(base+32+4*dt, 4)
            L.append(M16(acc, w, c, acc) if dt < 4 else M16(acc, c, w, acc))
        return L
    def stage(slot, vm, rd_next, dm, dstep=3):
        L = ["s_waitcnt lgkmcnt(0)"]
        L += interleave(mf(0), [(2*k, x) for k, x in enumerate(reads(slot, 1, 1))], 8, std_cost)
        L.append(f"s_waitcnt vmcnt({vm}) lgkmcnt(0)")
        m = mf(1)
        L += m[:1]; L.append("s_barrier")
        fill = [(2*k, x) for k, x in enumerate(rd_next)]
        pos = 1; dl = []
        for x in dm:
            if x == "NOP2": pos += 2; continue
            dl.append((pos, x)); pos += dstep if x.startswith("buffer") else 1
        return L + nopfix(interleave(m[1:], sorted(fill + dl, key=lambda t: t[0]), 8, std_cost))
    loop = []
    for slot in range(2): loop += stage(slot, 1, reads(1 - slot, 0, 0), dma_list(slot) + adv + TOUCH[:-1] + [TOUCH[-1].replace(f"v{TA+8},", f"v{TA+9-slot},")], float(os.environ.get("P1D", "3")))
    top = [".p2align 6", "L_p1loop:"]
    if QST == "p1":
        idx = [i for i, x in enumerate(loop) if x == "s_waitcnt lgkmcnt(0)"]
        un = []
        for it in range(3): un += [loop[0]] + _stamp(1 + 2*it) + loop[1:idx[1] + 1] + _stamp(2 + 2*it) + loop[idx[1] + 1:]
        loop = un + ["s_mov_b32 s45, 2"]
    bot = ["s_add_u32 s45, s45, 1", "s_cmp_lg_u32 s45, 3", "s_cbranch_scc1 L_p1loop"]
    o = []; e = o.append
    o += [f"s_cmp_lg_u32 s{sW}, 0", "s_cbranch_scc1 L_nopres", "v_readfirstlane_b32 s31, v60", f"s_lshl_b32 s33, s{sI}, 2", f"s_lshl_b32 s32, s{sH}, 7",
          "s_cmp_eq_u32 s31, 0", "s_cselect_b32 s100, s100, s31", "s_xor_b32 s101, s101, s100", "v_mov_b32 v60, s101", "s_add_u32 s33, s33, s32", "v_mov_b32 v61, 0",
          "s_mov_b64 exec, 1", f"buffer_store_dword v60, v61, {DBG}, s33 offen{SC}", "s_mov_b64 exec, -1", "L_nopres:"]
    o += qstamp("p1", 7) + stage(0, 1, reads(1, 0, 0), q_dma(0) + q_dma(1), 1.5) + qstamp("p1", 8)
    q0 = [q_xr(0, 0, 0, cb) for cb in range(4)] + [x for dt in range(8) for x in q_wr(0, dt)]
    o += stage(1, 12, q0, q_dma(2), 3) + qstamp("p1", 9)
    o.extend(stamp(2))
    groups = []
    n = 0
    for st in range(2):
        for kvp in range(2):
            for f in range(8):
                if kvp == 0:
                    q, z = divmod(f, 2); kt = 4*st + q; t0 = ((2*z)*8 + kt)*4; t1 = ((2*z+1)*8 + kt)*4; off = q*4096 + z*1024
                else:
                    b, qd = divmod(f, 4); ksp = 2*st + b; t0 = ((4+qd)*8 + 2*ksp)*4; t1 = t0 + 4; off = 16384 + b*8192 + qd*1024
                ob = ET + 8 + 4 * (n & 1); n += 1
                g = [f"v_accvgpr_read_b32 v{ET+r}, a{t0+r}" for r in range(4)] + [f"v_accvgpr_read_b32 v{ET+4+r}, a{t1+r}" for r in range(4)]
                if kvp == 0: g += [f"v_mul_f32 v{ET+r}, s44, v{ET+r}" for r in range(8)]
                g += [f"v_cvt_pk_bf16_f32 v{ob+r}, v{ET+2*r}, v{ET+2*r+1}" for r in range(4)]
                g += [f"v_accvgpr_write_b32 a{t0+r}, v{ob+r}" for r in range(4)]
                so = st*65536 + (off & ~4095)
                stv = [f"s_add_u32 s46, s{43 if kvp == 0 else 42}, {so}"] if (off & 4095) == 0 else []
                stv.append(f"buffer_store_dwordx4 {ar(t0,4)}, v{QL16}, {KV}, s46 offen offset:{off & 4095}{STSC}")
                groups.append((g, stv, f"ds_write_b128 v{(58, 62)[kvp] + st}, {ar(t0,4)} offset:{off}"))
    def bump(s):
        cur = XSL[s % 3] >= 65536; prev = XSL[(s - 1) % 3] >= 65536 if s else False
        if cur == prev: return []
        return [f"v_add_u32 v{QXR+k}, {'0x10000' if cur else '0xffff0000'}, v{QXR+k}" for k in range(4)]
    vmq = ["q1"]*12 + ["q2"]*12
    def vmwait(tag):
        idx = max(i for i, x in enumerate(vmq) if x == tag)
        return len(vmq) - 1 - idx
    conv = [(gi, x) for gi, g in enumerate(groups) for x in g[0]]
    done = 0
    sti = 0; dwi = 0; carry = []
    ST0 = int(os.environ.get("ST0", "14")); STN = int(os.environ.get("STN", "6"))
    for t in range(20):
        s, ks = divmod(t, 2); b = t & 1
        m = [M16(vr(128+(dt*4+cb)*4,4), vr(q_wslot(t,dt),4), vr(XF+16*b+4*cb,4), "0" if t == 0 else vr(128+(dt*4+cb)*4,4))
             for dt in range(8) for cb in range(4)]
        rd = []; dm = []; tag = None
        if ks == 0:
            if QST == "q": e("s_waitcnt lgkmcnt(0)")
            o.extend(qstamp("q", s + 1))
        else:
            BP = int(os.environ.get("QBP", "4"))
            o.extend(m[:BP]); m = m[BP:]
            e(f"s_waitcnt vmcnt({vmwait(f'q{s+1}')}) lgkmcnt(0)" if s < 9 else "s_waitcnt lgkmcnt(0)")
            e("s_barrier")
            if s <= 6: dm = q_dma(s + 3); tag = f"q{s+3}"
        if t < 19:
            s2, ks2 = divmod(t + 1, 2)
            off = 0 if ks == 0 else -BP
            for x in (bump(s2) if ks2 == 0 else []): rd.append((0, x))
            g = 0
            for dt in range(8):
                if dt == 1:
                    for cb in range(4): rd.append((g, q_xr(s2, ks2, 1 - b, cb))); g += 1
                g = max(g, 4 * (dt - 4) + 3 + off)
                for x in q_wr(t + 1, dt): rd.append((g, x)); g += 1
        if dm:
            cut = [i for i, x in enumerate(dm) if x.startswith("buffer")][6]
            while dm[cut - 1].startswith("s_"): cut -= 1
            carry = dm[cut:]; dm = dm[:cut]; ctag = tag
        elif ks == 0 and t > 0 and carry:
            dm = carry; carry = []; tag = ctag
        dl = []
        pos = 1.0
        for x in dm:
            dl.append((pos, x)); pos += 0.4 if x.startswith("s_") else 3.6
        mem = []
        if t >= ST0:
            k = min(done, sti + STN) if t < 19 else 32
            assert done >= k
            for gi in range(sti, k): mem += groups[gi][1]
            sti = k
        lim = 16 if t in (17, 18) else (32 if t == 19 else 0)
        k = min(lim, dwi + 8) if t < 19 else 32
        dws = [groups[gi][2] for gi in range(dwi, k)]; dwi = max(dwi, k)
        assert done >= dwi
        sl = [(2.0 + k * (len(m) - 3.0) / max(1, len(mem)), x) for k, x in enumerate(mem)]
        dw = [(0.6 + k * (len(m) - 2.0) / max(1, len(dws)), x) for k, x in enumerate(dws)]
        room = max(0, 2 * len(m) - len(rd) - len(dl) - len(sl) - len(dw) + int(os.environ.get("QRM", "5")))
        if t >= 17: room = len(conv) if t == 18 else room
        take = conv[:room]; conv = conv[room:]
        done = conv[0][0] if conv else 32
        seg = nopfix(interleave2(m, [rd, dl, sl, dw, [(0, x) for gi, x in take]], 8, std_cost))
        for x in seg:
            if x.startswith("buffer_store"): vmq.append("st")
            elif x.startswith("buffer_load_dword "): vmq.append("census")
            elif x.startswith("buffer_load"): vmq.append(tag)
        o.extend(seg)
        if os.environ.get("DUMP"): print("qstep", t, "instrs beyond mfma", len(seg) - len(m), "done", done, "stores", sti, "dsw", dwi)
    assert not conv and sti == 32 and dwi == 32
    o.extend(stamp(4))
    e(f"v_add_u32 v1, s{sW8K}, v{QL16}"); e(f"v_mov_b32 v24, v{QL16}"); e(f"v_mov_b32 v26, v{QFL}")
    e(f"s_cmp_lg_u32 s{sW}, 0"); e("s_cbranch_scc1 L_nocen2")
    e(f"buffer_load_dword v27, v{QFL}, {DBG}, 0 offen{SC}")
    e("L_nocen2:")
    for cb in range(4):
        for ds in range(4):
            for k in range(4):
                a = 128 + ((2*ds + (k >> 1))*4 + cb)*4 + 2*(k & 1)
                e(f"v_cvt_pk_bf16_f32 v{QR+16*cb+4*ds+k}, v{a}, v{a+1}")
    rest = fin(pre + top + loop + bot, o)
    return pre, top + loop + bot, rest

def wave0(lab, body):
    return [f"s_cmp_lg_u32 s{sW}, 0", f"s_cbranch_scc1 {lab}"] + body + [f"{lab}:"]
def set_flag(soff_sreg, imm=0):
    return ["v_mov_b32 v6, s100", "v_mov_b32 v7, 0", "s_mov_b64 exec, 1", f"buffer_store_dword v6, v7, {DBG}, {soff_sreg} offen offset:{imm}{SC}", "s_mov_b64 exec, -1"]
def wait_flags(lab, soff_sreg, mask):
    return [f"s_mov_b32 s34, {SPIN}", f"s_mov_b32 s33, {mask}", f"{lab}:", f"buffer_load_dword v8, v9, {DBG}, {soff_sreg} offen{SC}", "s_waitcnt vmcnt(0)",
            "v_cmp_eq_u32 vcc, s100, v8", "s_sub_u32 s34, s34, 1", "s_cselect_b32 s33, 0, s33", "s_andn2_b32 s31, s33, vcc_lo", f"s_cbranch_scc1 {lab}"]

def phase4():
    o = []; e = o.append
    e("L_p4:")
    e(f"s_load_dwordx2 s[56:57], s[0:1], {KA['out']}")
    e("s_and_b32 s31, s2, 7"); e("s_lshr_b32 s40, s31, 1"); e("s_and_b32 s31, s31, 1"); e("s_lshl_b32 s31, s31, 3"); e("s_lshr_b32 s42, s2, 3")
    e("s_and_b32 s41, s42, 7"); e("s_add_u32 s41, s41, s31"); e("s_lshr_b32 s42, s42, 3"); e("s_lshl_b32 s43, s41, 2"); e("s_add_u32 s43, s43, s42")
    e(f"s_and_b32 s44, s{sW}, 1"); e(f"s_lshr_b32 s45, s{sW}, 1")
    e("v_lshlrev_b32 v3, 4, v2"); e("v_and_b32 v9, 7, v2"); e("v_lshlrev_b32 v9, 2, v9")
    e("s_lshl_b32 s31, s42, 1"); e("s_add_u32 s31, s31, s45"); e("s_mul_i32 s31, s31, 148"); e("s_lshl_b32 s32, s40, 5"); e("s_add_u32 s31, s31, s32")
    e("s_add_u32 s31, s31, s44"); e("s_mul_i32 s47, s31, 5120")
    o.extend(srd(16, 6, WS_WOF, WS_WOF + 8 * 757760))
    e("v_add_u32 v12, 4096, v3")
    e(f"s_mul_i32 s38, s{sW}, 5120"); e("s_add_u32 s38, s38, 16384"); e(f"s_lshl_b32 s39, s{sW}, 12")
    SLOT = 36864
    def wdma(slot):
        return ([f"s_add_u32 m0, s38, {slot*SLOT}"] + [f"buffer_load_dwordx4 v3, s[16:19], s47 offen offset:{1024*k} lds" for k in range(4)]
                + [f"s_add_u32 m0, s38, {slot*SLOT+4096}", "buffer_load_dwordx4 v12, s[16:19], s47 offen lds", "s_add_u32 s47, s47, 10240"])
    def xdma(slot):
        return ([f"s_add_u32 m0, s39, {slot*SLOT}"] + [f"buffer_load_dwordx4 v{10+(k>>1)}, s[12:15], s46 offen offset:{1024*k}{SC} lds" for k in range(4)]
                + ["s_add_u32 s46, s46, 2048"])
    for sl in range(4): o.extend(nopfix(wdma(sl)))
    e("s_lshl_b32 s31, s41, 3"); e(f"s_lshl_b32 s32, s{sW}, 1"); e("s_add_u32 s31, s31, s32"); e("s_mul_i32 s31, s31, 148"); e("s_lshl_b32 s32, s40, 5")
    e("s_add_u32 s31, s31, s32"); e("s_lshl_b32 s46, s31, 10")
    e("v_mov_b32 v10, v3"); e("v_add_u32 v11, 149504, v3")
    e("s_lshr_b32 s31, s41, 1"); e("s_lshl_b32 s31, s31, 2"); e("s_add_u32 s31, s31, s40"); e("s_lshl_b32 s32, s31, 7"); e(f"s_add_u32 s32, s32, {FL_CTX}")
    o.extend(wave0("L_p4w1", wait_flags("L_p4s1", "s32", 255)))
    e("s_barrier")
    for sl in range(3): o.extend(nopfix(xdma(sl)))
    o.extend(stamp(10))
    for j in range(4):
        e(f"s_add_u32 s31, s40, {j}"); e("s_and_b32 s31, s31, 3"); e("s_lshl_b32 s32, s44, 2"); e("s_add_u32 s31, s31, s32"); e("s_lshl_b32 s31, s31, 11")
        e(f"v_add_u32 v{16+j}, s31, v3")
    e("s_mul_i32 s31, s45, 10240"); e("s_add_u32 s31, s31, 16384"); e("v_add_u32 v20, s31, v3")
    for k in range(5): e(f"v_add_u32 v{21+k}, {2*SLOT}, v{16+k}")
    for r in range(160): e(f"v_accvgpr_write_b32 a{r}, 0")
    FB = 32
    def reads(slot, st, b):
        base = FB + 36 * b; hi = 5 * (slot >> 1); so = (slot & 1) * SLOT
        X = [f"ds_read_b128 {vr(base+4*j,4)}, v{16+hi+j} offset:{so+st*1024}" for j in range(4)]
        W = [f"ds_read_b128 {vr(base+16+4*nt,4)}, v{20+hi} offset:{so+st*5120+nt*1024}" for nt in range(5)]
        return [W[0]] + X + W[1:]
    def mf(b):
        base = FB + 36 * b
        return [M16(ar((j*5+nt)*4,4), vr(base+16+4*nt,4), vr(base+4*j,4), ar((j*5+nt)*4,4)) for nt in range(5) for j in range(4)]
    e("s_mov_b32 s37, 0")
    e("s_waitcnt vmcnt(0) lgkmcnt(0)"); e("s_barrier")
    o.extend(reads(0, 0, 0))
    pre = o
    top = [".p2align 6", "L_p4loop:"]
    loop = []
    for sl in range(4):
        prev = xdma((sl - 1) & 3)
        m = mf(0)
        loop += nopfix(interleave2(m, [[(2*k, x) for k, x in enumerate(reads(sl, 1, 1))], [(1 + 3.5*k if k else 0, x) for k, x in enumerate(prev)]], 8, std_cost))
        m = mf(1)
        loop += m[:2] + ["s_waitcnt vmcnt(VM) lgkmcnt(0)", "s_barrier"]
        ex = []
        if sl == 0: ex = ["s_cmp_eq_u32 s37, 3", "s_cselect_b32 s14, 0, s14", "s_cselect_b32 s18, 0, s18"]
        if sl == 3: ex = ["s_add_u32 s37, s37, 1"]
        wd = wdma(sl); pos = 0.0; dl = []
        for x in ex + wd:
            dl.append((pos, x)); pos += 0.5 if x.startswith("s_") else 3
        loop += nopfix(interleave2(m[2:], [[(2*k, x) for k, x in enumerate(reads((sl + 1) & 3, 0, 0))], dl], 8, std_cost))
    return pre, top, loop, reads, xdma

def phase4_build():
    pre, top, loop, reads, xdma = phase4()
    loop = [x.replace("vmcnt(VM)", "vmcnt(18)") for x in loop]
    loop = fin(pre + ["s_waitcnt lgkmcnt(0)"] + top + fin(pre + top, loop), loop); pre = pre + ["s_waitcnt lgkmcnt(0)"]
    bot = ["s_cmp_lg_u32 s37, 4", "s_cbranch_scc1 L_p4loop"]
    o = []; e = o.append
    o.extend(stamp(11))
    o.extend(srd(20, 6, WS_XCH, WS_XCH + 64 * 4 * 3 * 4 * 5120))
    e(f"s_mul_i32 s35, s{sW}, 5120"); e("s_mul_i32 s31, s43, 245760"); e("s_add_u32 s35, s35, s31")
    for j in range(1, 4):
        e(f"s_add_u32 s31, s40, {j}"); e("s_and_b32 s31, s31, 3"); e("s_mul_i32 s31, s31, 61440"); e("s_add_u32 s31, s31, s35"); e(f"s_add_u32 s31, s31, {(j-1)*20480}")
        for nt in range(5):
            e(f"buffer_store_dwordx4 {ar((j*5+nt)*4,4)}, v3, s[20:23], s31 offen offset:{1024*nt}{SC}" if nt < 4 else
              f"buffer_store_dwordx4 {ar((j*5+nt)*4,4)}, v12, s[20:23], s31 offen{SC}")
    e("s_waitcnt vmcnt(15)")
    e(f"s_mov_b32 s14, {128*148*1024}"); e(f"s_mov_b32 s18, {8*757760}")
    e(f"s_mul_i32 s47, s{sI}, 757760"); e(f"s_mul_i32 s31, s{sW}, 25600"); e("s_add_u32 s47, s47, s31"); e("s_add_u32 s47, s47, 655360")
    e("s_waitcnt lgkmcnt(0)")
    RB = 32
    for st in range(5):
        for nt in range(5):
            e(f"buffer_load_dwordx4 {vr(RB+36*st+16+4*nt,4)}, v3, s[16:19], s47 offen offset:{1024*nt}" if nt < 4 else
              f"buffer_load_dwordx4 {vr(RB+36*st+32,4)}, v12, s[16:19], s47 offen")
        e("s_add_u32 s47, s47, 5120")
    for j in range(4):
        e(f"s_add_u32 s31, s{sW}, {j}"); e("s_and_b32 s31, s31, 3"); e("s_mul_i32 s31, s31, 151552"); e(f"v_add_u32 v{16+j}, s31, v3")
    e(f"s_mul_i32 s46, s{sH}, 606208"); e(f"s_mul_i32 s31, s{sW}, 5120"); e("s_add_u32 s46, s46, s31"); e("s_add_u32 s46, s46, 131072")
    e(f"s_lshl_b32 s32, s{sH}, 7"); e(f"s_add_u32 s32, s32, {FL_OB}")
    o.extend(wave0("L_p4w2", wait_flags("L_p4s2", "s32", sum(1 << i for i in range(8) if NB[i]))))
    e("s_waitcnt vmcnt(25)"); e("s_barrier")
    e("s_lshl_b32 s32, s43, 7"); e(f"s_add_u32 s32, s32, {FL_X}"); e("s_lshl_b32 s31, s40, 2"); e("s_add_u32 s31, s31, s32")
    o.extend(wave0("L_p4w3", set_flag("s31")))
    for st in range(5):
        for j in range(4): e(f"buffer_load_dwordx4 {vr(RB+36*st+4*j,4)}, v{16+j}, s[12:15], s46 offen offset:{1024*st if st < 4 else 0}{SC}".replace("s46 offen offset:0", "s46 offen offset:0"))
        if st == 3: e("s_add_u32 s46, s46, 4096")
    o.extend(srd(60, 56, None, SZ['out']))
    for j in range(1, 4):
        e(f"s_add_u32 s31, s{sW}, {j}"); e("s_and_b32 s31, s31, 3"); e("s_mul_i32 s31, s31, 15360"); e(f"s_add_u32 s31, s31, {(j-1)*5120}"); e(f"v_add_u32 v{20+j}, s31, v3")
    e(f"s_mul_i32 s31, s{sW}, 15360"); e("v_add_u32 v24, s31, v3")
    e("v_mul_u32_u24 v13, 2560, v4"); e("v_mul_u32_u24 v14, 40, v5"); e("v_add_u32 v13, v13, v14")
    e("s_lshl_b32 s31, s41, 3"); e("s_lshl_b32 s33, s44, 2"); e("s_add_u32 s31, s31, s33"); e("s_add_u32 s31, s31, s40"); e("s_mul_i32 s31, s31, 40960")
    e("s_lshl_b32 s33, s42, 1"); e("s_add_u32 s33, s33, s45"); e("s_mul_i32 s33, s33, 160"); e("s_add_u32 s31, s31, s33"); e("v_add_u32 v14, s31, v13")
    e(f"s_lshl_b32 s31, s{sH}, 2"); e(f"s_add_u32 s31, s31, s{sW}"); e("s_mul_i32 s31, s31, 40960"); e(f"s_mul_i32 s33, s{sI}, 160"); e("s_add_u32 s31, s31, s33")
    e("s_add_u32 s31, s31, 1280"); e("v_add_u32 v13, s31, v13")
    for st in range(5):
        e(f"s_waitcnt vmcnt({4*(4-st)})")
        for nt in range(5):
            for j in range(4):
                acc = ar(80 + (j*5+nt)*4, 4)
                e(M16(acc, vr(RB+36*st+16+4*nt, 4), vr(RB+36*st+4*j, 4), acc))
    e("s_nop 7")
    for j in range(1, 4):
        for nt in range(5): e(f"ds_write_b128 v{20+j}, {ar(80+(j*5+nt)*4,4)} offset:{nt*1024}")
    for r in range(20): e(f"v_accvgpr_read_b32 v{32+r}, a{80+r}")
    for r in range(20): e(f"v_accvgpr_read_b32 v{52+r}, a{r}")
    o.extend(wave0("L_p4w4", wait_flags("L_p4s4", "s32", 15)))
    e("s_waitcnt lgkmcnt(0)"); e("s_barrier")
    e("s_mul_i32 s31, s40, 61440"); e("s_add_u32 s35, s35, s31")
    for sl in range(3):
        for nt in range(5):
            e(f"buffer_load_dwordx4 {vr(140+20*sl+4*nt,4)}, v3, s[20:23], s35 offen offset:{1024*nt}{SC}" if nt < 4 else
              f"buffer_load_dwordx4 {vr(140+20*sl+16,4)}, v12, s[20:23], s35 offen{SC}")
        if sl < 2: e("s_add_u32 s35, s35, 20480")
    for sl in range(3):
        for q in range(5): e(f"ds_read_b128 {vr(72+20*sl+4*q,4)}, v24 offset:{sl*5120+q*1024}")
    def finish(src, acc, addr):
        L = []
        for sl in range(3):
            L += [f"v_add_f32 v{acc+r}, v{acc+r}, v{src+20*sl+r}" for r in range(20)]
        L += [f"v_cvt_pk_bf16_f32 v{src+r}, v{acc+2*r}, v{acc+2*r+1}" for r in range(10)]
        L += [f"buffer_store_dwordx4 {vr(src,4)}, v{addr}, s[60:63], 0 offen", f"buffer_store_dwordx4 {vr(src+4,4)}, v{addr}, s[60:63], 0 offen offset:16",
              f"buffer_store_dwordx2 {vr(src+8,2)}, v{addr}, s[60:63], 0 offen offset:32"]
        return L
    e("s_waitcnt lgkmcnt(0)")
    o.extend(finish(72, 32, 13))
    e("s_waitcnt vmcnt(3)")
    o.extend(finish(140, 52, 14))
    o.extend(stamp(12))
    if STAMP: o.extend(stamp_flush(2, 13, 6, f"s{sW}", "mega"))
    e("s_endpgm")
    post = fix_hazards(pre + top + loop + bot, o)
    return pre, top + loop + bot, post

def phase3():
    P = {}
    def Kf(b, t, ds): return vr(KB + 32 * b + 4 * (4 * t + ds), 4)
    def Vf(b, dt): return ar(AV + 32 * b + 4 * dt, 4)
    def rdK(b, sp, f, addr, off): return f"ds_read_b128 {vr(KB+32*b+4*f,4)}, v{addr} offset:{off + sp*8192 + f*1024}"
    def rdV(b, sp, f, addr, off): return f"ds_read_b128 {ar(AV+32*b+4*f,4)}, v{addr} offset:{off + 16384 + sp*8192 + f*1024}"
    def stat(slot): return [(VL16, 0), (VL16, 32768), (VL16H, 0), (VL16H, 32768), (VL16HH, 0)][slot]
    def QK(p, b, cb, last):
        L = []
        for ds in range(4):
            for t in range(2):
                d = vr(SR + 8 * (p & 1) + 4 * t, 4)
                c = d if ds else (vr(CL + 8 * cb + 4 * t, 4) if last else vr(NM + 4 * cb, 4))
                L.append(M16(d, Kf(b, t, ds), vr(QR + 16 * cb + 4 * ds, 4), c))
        return L
    def PV(p, b, cb, init):
        pf = vr(PR + 4 * (p & 1), 4)
        L = [M16(ar(AO + (dt * 4 + cb) * 4, 4), Vf(b, dt), pf, "0" if init else ar(AO + (dt * 4 + cb) * 4, 4)) for dt in range(8)]
        L.append(M16(ar(AL + 4 * cb, 4), vr(ONES, 4), pf, "0" if init else ar(AL + 4 * cb, 4)))
        return L
    def block(p, units, extra, init=False):
        mf = []
        if p + 2 in units: mf += QK(p + 2, *units[p + 2])
        if p in units: mf += PV(p, *units[p][:2], init)
        ex = cv = []
        if p + 1 in units:
            s = SR + 8 * ((p + 1) & 1); d = PR + 4 * ((p + 1) & 1)
            ex = [f"v_exp_f32 v{s+k}, v{s+k}" for k in range(8)]
            cv = [f"v_cvt_pk_bf16_f32 v{d+k}, v{s+2*k}, v{s+2*k+1}" for k in range(4)]
        extra = list(extra); ei = ci = 0; seq = []
        ismem = lambda x: x.startswith("ds_") or x.startswith("buffer_")
        ncheap = max(1, len(mf) - len(ex))
        while ei < len(ex) or ci < len(cv) or extra:
            cur = []
            left = max(1, ncheap - sum(1 for z in seq if not z[0].startswith("v_exp")))
            many = sum(1 for x in extra if ismem(x)) > left
            while len(cur) < 2:
                if extra and (not ismem(extra[0]) or many or not any(ismem(x) for x in cur)): cur.append(extra.pop(0))
                elif ci < len(cv) and ei >= 2 * ci + 2: cur.append(cv[ci]); ci += 1
                else: break
            if cur: seq.append(cur)
            if ei < len(ex): seq.append([ex[ei]]); ei += 1
            elif not cur: break
        out = []
        for k, m in enumerate(mf):
            out.append(m)
            if k < len(seq): out += seq[k]
        return nopfix(out + [x for s in seq[len(mf):] for x in s])

    o = []; e = o.append
    e("L_p3:")
    e(f"v_mov_b32 v{VDMA}, v1"); e(f"v_mov_b32 v{VL16}, v24"); e(f"v_add_u32 v{VL16H}, 0x10000, v24"); e(f"v_add_u32 v{VL16HH}, 0x20000, v24")
    e("v_and_b32 v3, 3, v2"); e("v_cmp_eq_u32 vcc, 0, v3"); e("v_mov_b32 v6, 0x3f803f80"); e("v_mov_b32 v7, 0")
    for r in range(4): e(f"v_cndmask_b32 v{ONES+r}, v7, v6, vcc")
    e("s_mov_b32 s39, 0")
    o.extend(srd(12, 6, WS_CTX, WS_CTX + 128 * 148 * 1024))
    e("L_att_start:")
    e(f"s_lshl_b32 s10, s{sI}, 17")
    e("s_mov_b32 s35, 0")
    e("s_waitcnt lgkmcnt(0)"); e("s_barrier")
    e(f"s_cmp_lt_u32 s{sW}, 2"); e("s_cbranch_scc0 L_attB")
    P["head"] = o
    def diag_units(cnt):
        return [(J, cb, J == cnt[cb] - 1) for J in range(8) for cb in (3, 2, 1, 0) if J < cnt[cb]]
    full = lambda f: ((f // 4) & 1, f % 4, False)
    for name, cnt, sh in (("A", [1, 4, 5, 8], 0), ("B", [2, 3, 6, 7], 1)):
        U = diag_units(cnt); assert len(U) == 18
        bf = lambda J: (J + sh) & 1
        o = []; e = o.append
        e(f"L_att{name}:")
        o.extend([rdK(bf(0), 0, f, *stat(1)) for f in range(8)] + [rdV(bf(0), 0, f, *stat(1)) for f in range(8)])
        e("s_cmp_lg_u32 s39, 0"); e(f"s_cbranch_scc1 L_have{name}")
        P["rd" + name] = o; o = []; e = o.append
        if name == "A":
            e(f"s_and_b32 s33, s{sW}, 1"); e(f"v_mov_b32 v6, {NEG}"); e("v_mov_b32 v7, 0"); e("s_cmp_eq_u32 s33, 0")
            for t in range(2):
                for r in range(4):
                    e(f"s_cselect_b64 s[56:57], {sr(48+2*r,2)}, 0" if t == 0 else f"s_cselect_b64 s[56:57], -1, {sr(48+2*r,2)}")
                    e(f"v_cndmask_b32 v{T+4*t+r}, v7, v6, s[56:57]")
        e("s_waitcnt lgkmcnt(8)")
        for cb in (3, 2, 1, 0):
            for ds in range(4):
                for t in range(2):
                    d = vr(CL + 8*cb + 4*t, 4)
                    c = d if ds else (vr(T+4*t, 4) if (cb == 0 and name == "A") else "0")
                    e(M16(d, Kf(bf(0), t, ds), vr(QR+16*cb+4*ds, 4), c))
        for cb in (3, 2, 1, 0):
            s = CL + 8*cb; m = NM + 4*cb
            e(f"v_max3_f32 v{m}, v{s}, v{s+1}, v{s+2}"); e(f"v_max3_f32 v{m+1}, v{s+3}, v{s+4}, v{s+5}")
            e(f"v_max3_f32 v{m}, v{m}, v{s+6}, v{s+7}"); e(f"v_max_f32 v{m}, v{m}, v{m+1}")
        xl = []
        for sw in ("v_permlane32_swap_b32", "v_permlane16_swap_b32"):
            xl += [f"v_mov_b32 v{NM+4*cb+1}, v{NM+4*cb}" for cb in range(4)]
            xl += [f"{sw} v{NM+4*cb}, v{NM+4*cb+1}" for cb in range(4)]
            xl += [f"v_max_f32 v{NM+4*cb}, v{NM+4*cb}, v{NM+4*cb+1}" for cb in range(4)]
        xl += [f"v_sub_f32 v{NM+4*cb+r}, 0, v{NM+4*cb}" for cb in range(4) for r in (1, 2, 3, 0)]
        P["xl"] = xl
        P["mx" + name] = fix_hazards(P["head"] + P["rd" + name], o + xl)
        o = []; e = o.append
        e(f"L_have{name}:")
        e(f"v_mov_b32 v6, {NEG}"); e(f"s_and_b32 s33, s{sW}, 1")
        for par in range(2):
            e(f"s_cmp_eq_u32 s33, {par}")
            for t in range(2):
                for r in range(4):
                    e(f"s_cselect_b64 s[56:57], {sr(48+2*r,2)}, 0" if t == 0 else f"s_cselect_b64 s[56:57], -1, {sr(48+2*r,2)}")
                    for cb in (par, par + 2): e(f"v_cndmask_b32 v{CL+8*cb+4*t+r}, v{NM+4*cb}, v6, s[56:57]")
        e("s_waitcnt lgkmcnt(8)")
        o.extend(stamp(5))
        units = {d: (bf(U[d][0]), U[d][1], U[d][2]) for d in range(18)}
        units.update({18 + f: full(f) for f in range(0, 8)})
        first = {}; last = {}
        for d, (J, cb, _) in enumerate(U):
            first.setdefault(J, d); last[J] = d
        steps = sorted(first)
        nJ = len(steps)
        for k in range(2):
            first[nJ + k] = 18 + 4 * k; last[nJ + k] = 21 + 4 * k
        sched = {p: [] for p in range(-2, 21)}
        def place(grp, need, lo):
            a = max(lo, need - 3)
            bl = [a, a + 1] if a + 1 <= need - 1 else [a]
            assert bl[-1] <= need - 1, (name, need, lo)
            n = len(grp) // len(bl)
            for k, b in enumerate(bl): sched[b] += grp[k*n:(k+1)*n]
        for J in range(1, nJ + 2):
            if J < nJ: pub = -2; ad = stat(J // 2 + 1); b = bf(J); sp = J & 1
            else: pub = 15; ad = stat(0); b = (J - nJ) & 1; sp = b
            place([rdK(b, sp, f, *ad) for f in range(8)], first[J] - 2, max(pub, last[J-2] - 1 if J >= 2 else -2))
            place([rdV(b, sp, f, *ad) for f in range(8)], first[J], max(pub, last[J-2] + 1 if J >= 2 else -2))
        def spread(dm, blocks):
            n = -(-len(dm) // len(blocks))
            for k, b in enumerate(blocks): sched[b] += dm[k*n:(k+1)*n]
        spread(kv_stage_static(0), [8, 9, 10]); spread(kv_stage_static(1), [11, 12, 13, 14]); spread(kv_stage_static(2), [15, 16, 17])
        spread(kv_stage_static(3), [18, 19, 20])
        bars = {2: "vmcnt(0)", 8: "lgkmcnt(0)", 13: "lgkmcnt(0)", 15: "vmcnt(VM15) lgkmcnt(0)"}
        body = []
        for p in range(-2, 21):
            if QST == "d" and p in (-2, 0, 2, 8, 10, 13, 15): body += _stamp(1 + [-2, 0, 2, 8, 10, 13, 15].index(p))
            if name == "A" and p == 5:
                body += [f"s_cmp_lg_u32 s{sW}, 0", "s_cbranch_scc1 L_nopoll", f"buffer_load_dword v27, v26, {DBG}, 0 offen offset:32{SC}", "L_nopoll:"]
            if name == "A" and p == 8:
                body += [f"s_cmp_lg_u32 s{sW}, 0", "s_cbranch_scc1 L_acqd", "s_waitcnt vmcnt(0)", "v_cmp_eq_u32 vcc, s100, v27", f"s_lshl_b32 s33, 1, s{sI}",
                         "s_sub_u32 s33, s33, 1", "s_andn2_b32 s31, s33, vcc_lo", "s_cbranch_scc1 L_spin", "L_spun:", "s_cmp_lg_u32 s46, 0", "s_cbranch_scc1 L_acq", "L_acqd:"]
            if p in bars: body += [f"s_waitcnt {bars[p]}", "s_barrier"]
            if QST == "d" and p == 2: body += _stamp(8)
            if QST == "d" and p == 9: body += _stamp(9)
            if QST == "d" and p == 17: body += _stamp(10)
            if p == 2 and name == "A":
                body += [f"s_cmp_lg_u32 s{sW}, 0", "s_cbranch_scc1 L_noflag", "v_cmp_ne_u32 vcc, s101, v27", f"s_lshl_b32 s31, s{sI}, 2", f"s_lshl_b32 s33, s{sH}, 7",
                         "s_or_b32 s46, vcc_lo, s39", "v_mov_b32 v25, s100", "s_cbranch_scc1 L_wb", "L_wbd:", "s_add_u32 s31, s31, s33", "v_mov_b32 v27, 0", "s_mov_b64 exec, 1",
                         f"buffer_store_dword v25, v27, {DBG}, s31 offen offset:32{SC}", "s_mov_b64 exec, -1", "L_noflag:"]
            body += block(p, units, sched[p], init=(p < 4))
            if p == 17: body += [f"s_cmp_eq_u32 s{sI}, 0", "s_cbranch_scc1 L_epiA"]
        body += ["s_mov_b32 s38, 0", "s_mov_b32 s45, 131072", "s_mov_b32 s33, 32768", f"v_add_u32 v{VRD}, 0x8000, v{VL16}", f"s_lshl_b32 s37, s{sI}, 2", "s_sub_u32 s37, s37, 1"]
        if name == "A": body.append("s_branch L_loop")
        pre = P["head"] + P["rd" + name] + P["mx" + name]
        i15 = body.index("s_waitcnt vmcnt(VM15) lgkmcnt(0)")
        nld = sum(1 for x in body[:i15] if x.startswith("buffer_load_dwordx4"))
        body[i15] = f"s_waitcnt vmcnt({nld - 8}) lgkmcnt(0)"
        P["d" + name] = fin(pre, o + body)
    P["spin"] = ["L_spin:", f"s_mov_b32 s34, {SPIN}", "L_spinl:", "s_sleep 2",
                 f"buffer_load_dword v27, v26, {DBG}, 0 offen offset:32{SC}", "s_waitcnt vmcnt(0)", "v_cmp_eq_u32 vcc, s100, v27", "s_sub_u32 s34, s34, 1",
                 "s_cselect_b32 s33, 0, s33", "s_andn2_b32 s31, s33, vcc_lo", "s_cbranch_scc1 L_spinl", "s_branch L_spun",
                 "L_acq:", "buffer_inv sc1", "s_waitcnt vmcnt(0)", "s_branch L_acqd"]
    funits = {f: full(f) for f in range(0, 64)}
    top = [".p2align 6", "L_loop:", "s_waitcnt vmcnt(16) lgkmcnt(0)", "s_barrier"]
    nxt = ["s_mov_b32 s45, s38", "s_mov_b32 s38, s33", "s_add_u32 s33, s33, 32768", "s_cmp_eq_u32 s33, 163840", "s_cselect_b32 s33, 0, s33",
           f"v_add_u32 v{VRD}, s33, v{VL16}", "s_sub_u32 s37, s37, 1"]
    loop = []
    for k in range(8):
        p = 11 + k
        j, r = divmod(p + 1, 4)
        ex = [rdK((j+1)&1, (j+1)&1, 4*r+f, VRD, 0) for f in range(4)] if r < 2 else [rdV((j+1)&1, (j+1)&1, 4*(r-2)+f, VRD, 0) for f in range(4)]
        d = []
        if k % 4 == 0: d.append(f"s_add_u32 m0, s{sW8K}, s45" if k == 0 else "s_add_u32 m0, m0, 4096")
        d.append(kv_dma(k))
        if k == 3: d.append("s_add_u32 s35, s35, 4096")
        if k == 5: d += nxt[:2]
        if k == 6: d += nxt[2:5]
        if k == 7: d += ["s_add_u32 s35, s35, 28672"] + nxt[5:]
        ex = ex[:2] + d[:1] + ex[2:] + d[1:] if " m0," in d[0] else ex + d
        loop += block(p, funits, ex)
    pathA = P["head"] + P["rdA"] + P["mxA"] + P["dA"]
    loop = fin(pathA + top, loop)
    bot = ["s_cbranch_scc0 L_loop"] if False else ["s_cmp_lg_u32 s37, 0", "s_cbranch_scc1 L_loop"]
    tu = {f: full(f) for f in range(8, 16)}
    tail = []
    for p in range(11, 16): tail += block(p, tu, [])
    tail = fin(pathA + top + loop + bot, tail)
    P["loop"] = top + loop + bot; P["tail"] = tail
    o = []; e = o.append
    e("L_epiA:")
    o.extend(stamp(6))
    nbp = sum(NB[i] << (4*i) for i in range(8)); pres = [sum(NB[:i]) for i in range(8)]
    e(f"s_lshl_b32 s31, s{sI}, 2"); e(f"s_lshr_b32 s40, {nbp}, s31"); e("s_and_b32 s40, s40, 15")
    plo = sum(pres[i] << (8*i) for i in range(4)); phi = sum(pres[4+i] << (8*i) for i in range(4))
    e(f"s_mov_b32 s42, {plo}"); e(f"s_mov_b32 s43, {phi}"); e(f"s_lshl_b32 s31, s{sI}, 3"); e("s_lshr_b64 s[42:43], s[42:43], s31"); e("s_and_b32 s41, s42, 255")
    e("s_lshl_b32 s41, s41, 2"); e(f"s_mul_i32 s31, s{sW}, s40"); e("s_add_u32 s41, s41, s31")
    o.extend(srd(16, 6, WS_KVB, WS_KVB + 64*4096))
    e("s_waitcnt vmcnt(0) lgkmcnt(0)"); e("s_barrier")
    bd = []
    for s in range(3):
        for k in range(8):
            if k % 4 == 0: bd += [f"s_add_u32 m0, s{sW8K}, {s*32768+(k//4)*4096}", f"s_mov_b32 s34, {s*32768+(k//4)*4096}"]
            bd.append(f"buffer_load_dwordx4 v{VDMA}, s[16:19], s34 offen offset:{1024*(k&3)} lds")
    e("s_cmp_eq_u32 s40, 0"); e("s_cbranch_scc1 L_nopref")
    P["epi1"] = o; o = []; e = o.append
    BQ = 192
    o.extend(srd(20, 6, WS_QB, WS_QB + SZ['B_x']))
    e("s_lshr_b32 s42, s41, 5"); e(f"s_lshl_b32 s31, s{sH}, 1"); e("s_add_u32 s42, s42, s31"); e("s_and_b32 s43, s41, 31")
    e("v_and_b32 v3, 31, v2"); e("s_lshl_b32 s31, s42, 5"); e("v_add_u32 v3, s31, v3"); e("v_mul_u32_u24 v3, 1280, v3")
    e("s_mul_i32 s31, s43, 40"); e("v_add_u32 v3, s31, v3"); e("v_lshrrev_b32 v6, 5, v2"); e("v_lshlrev_b32 v6, 4, v6"); e("v_add_u32 v6, v3, v6")
    for cb in range(NMAX):
        e(f"buffer_load_dwordx4 {vr(BQ+8*cb,4)}, v6, s[20:23], 0 offen offset:{40*cb}")
        e(f"buffer_load_dwordx2 {vr(BQ+8*cb+4,2)}, v3, s[20:23], 0 offen offset:{40*cb+32}")
    o.extend(bd[:12])
    P["pref"] = o; o = []; e = o.append
    e("L_nopref:")
    def vote_write(nreg, areg, guard):
        L = [f"s_mov_b32 s31, {f2u(2.0**100)}", "s_mov_b64 s[56:57], 0"]
        for cb in range(nreg):
            if guard: L += [f"s_cmp_le_u32 s40, {cb}", f"s_cbranch_scc1 {guard}"]
            L += [f"v_accvgpr_read_b32 v{T+cb}, a{areg(cb)}",
                  f"v_cmp_ngt_f32 vcc, s31, v{T+cb}", "s_nop 1", "s_or_b64 s[56:57], s[56:57], vcc",
                  f"v_cmp_nlt_f32 vcc, 0.5, v{T+cb}", "s_nop 1", "s_or_b64 s[56:57], s[56:57], vcc"]
        if guard: L.append(guard + ":")
        L += ["s_cmp_lg_u64 s[56:57], 0", "s_cselect_b32 s31, 1, 0", "v_mov_b32 v7, s31", f"s_lshl_b32 s31, s{sW}, 2", f"s_add_u32 s31, s31, {VOTE}",
              "v_mov_b32 v6, s31", "ds_write_b32 v6, v7"]
        return L
    def vote_read(target):
        return [f"v_mov_b32 v6, {VOTE}", "ds_read_b128 v[8:11], v6", "s_waitcnt lgkmcnt(0)", "v_or3_b32 v8, v8, v9, v10", "v_or_b32 v8, v8, v11", "s_nop 0",
                "v_readfirstlane_b32 s31, v8", "s_nop 0", "s_cmp_lg_u32 s39, 0", "s_cselect_b32 s31, 0, s31", "s_cmp_lg_u32 s31, 0", f"s_cbranch_scc1 {target}"]
    o.extend(vote_write(4, lambda cb: AL + 4*cb, None))
    for cb in range(4): e(f"v_rcp_f32 v{T+4+cb}, v{T+cb}")
    e(f"s_lshl_b32 s31, s{sI}, 4"); e(f"s_add_u32 s32, s31, s{sW}"); e(f"s_sub_u32 s33, s31, s{sW}"); e("s_add_u32 s33, s33, 7")
    e("s_mul_i32 s32, s32, 151552"); e("s_mul_i32 s33, s33, 151552"); e(f"s_lshl_b32 s31, s{sH}, 12"); e("s_add_u32 s32, s32, s31"); e("s_add_u32 s33, s33, s31")
    n = 0
    for cb in range(4):
        if cb == 2: e(f"s_add_u32 s32, s32, {8*151552}"); e(f"s_add_u32 s33, s33, {8*151552}")
        for ds in range(4):
            tb = 128 + 16 * (n % 4); n += 1
            for k in range(8): e(f"v_accvgpr_read_b32 v{tb+k}, a{AO+((2*ds+(k>>2))*4+cb)*4+(k&3)}")
            for k in range(8): e(f"v_mul_f32 v{tb+k}, v{tb+k}, v{T+4+cb}")
            for k in range(4): e(f"v_cvt_pk_bf16_f32 v{tb+8+k}, v{tb+2*k}, v{tb+2*k+1}")
            e(f"buffer_store_dwordx4 {vr(tb+8,4)}, v{VL16}, s[12:15], s{32+(cb&1)} offen offset:{1024*ds}{SC}")
    o.extend(stamp(7))
    e("s_cmp_eq_u32 s40, 0"); e("s_cbranch_scc1 L_nopref2")
    P["epi2"] = o
    P["pref2"] = bd[12:]
    o = []; e = o.append
    e("L_nopref2:")
    e("s_waitcnt vmcnt(32) lgkmcnt(0)"); e("s_barrier")
    o.extend(vote_read("L_fbA"))
    ctxflag = [f"s_lshl_b32 s31, s{sI}, 2", f"s_lshr_b32 s33, s{sH}, 3", "s_add_u32 s31, s31, s33", "s_lshl_b32 s31, s31, 7", f"s_and_b32 s33, s{sH}, 7",
               "s_lshl_b32 s33, s33, 2", "s_add_u32 s31, s31, s33", f"s_add_u32 s31, s31, {FL_CTX}"] + set_flag("s31")
    e("s_cmp_eq_u32 s40, 0"); e("s_cbranch_scc1 L_fin0")
    e("s_mov_b32 s39, 0")
    BK = 128; BV = 144; BS = 64; BP = 96; VCUR = 112; VNXT = 113
    e("L_B_start:")
    for f in range(2): e(f"ds_read_b128 {vr(BK+4*f,4)}, v{VL16} offset:{1024*f}")
    for r in range(16 * NMAX): e(f"v_accvgpr_write_b32 a{r}, 0")
    e("s_mov_b32 s34, 98304"); e("s_mov_b32 s38, 0"); e("s_mov_b32 s37, 8")
    e("s_waitcnt lgkmcnt(0)")
    e("s_cmp_lg_u32 s39, 0"); e("s_cbranch_scc1 L_B_have")
    P["bhead"] = o; o = []; e = o.append
    for cb in range(NMAX): e(f"v_mov_b32 v{BQ+8*cb+6}, 0"); e(f"v_mov_b32 v{BQ+8*cb+7}, 0")
    e("s_nop 0")
    for cb in range(NMAX):
        d = vr(BS + 16*cb, 16)
        e(M32(d, vr(BK, 4), vr(BQ+8*cb, 4), "0")); e(M32(d, vr(BK+4, 4), vr(BQ+8*cb+4, 4), d))
    for cb in range(NMAX):
        s = BS + 16*cb; m = T + cb
        e(f"v_max3_f32 v{m}, v{s}, v{s+1}, v{s+2}")
        for k in range(3, 15, 2): e(f"v_max3_f32 v{m}, v{m}, v{s+k}, v{s+k+1}")
        e(f"v_max_f32 v{m}, v{m}, v{s+15}")
    bxl = [f"v_mov_b32 v{T+8+cb}, v{T+cb}" for cb in range(NMAX)] + ["s_nop 0"]
    bxl += [f"v_permlane32_swap_b32 v{T+cb}, v{T+8+cb}" for cb in range(NMAX)]
    for cb in range(NMAX):
        m = T + cb; t = T + 8 + cb
        bxl += [f"v_max_f32 v{m}, v{m}, v{t}", f"v_sub_f32 v{m}, 0, v{m}", f"v_and_b32 v{t}, 0xffff0000, v{m}", f"v_sub_f32 v{m}, v{m}, v{t}",
                f"v_lshrrev_b32 v{t}, 16, v{t}", f"v_and_b32 v6, 0xffff0000, v{m}", f"v_or_b32 v{BQ+8*cb+6}, v{t}, v6", f"v_sub_f32 v{m}, v{m}, v6",
                f"v_lshrrev_b32 v{BQ+8*cb+7}, 16, v{m}"]
    P["bmax"] = fix_hazards(P["bhead"], o + bxl)
    o = []; e = o.append
    e("L_B_have:")
    ns = sorted(set(x for x in NB if x))
    for nn in ns[:-1]:
        e(f"s_cmp_eq_u32 s40, {nn}"); e(f"s_cbranch_scc1 L_B{nn}")
    e(f"s_branch L_B{ns[-1]}")
    P["bsel"] = o
    def bQK(p, n):
        j, cb = divmod(p, n); d = vr(BS + 16*(p & 1), 16)
        return [M32(d, vr(BK+8*(j&1), 4), vr(BQ+8*cb, 4), "0"), M32(d, vr(BK+8*(j&1)+4, 4), vr(BQ+8*cb+4, 4), d)]
    def bPV(p, n):
        j, cb = divmod(p, n); a = ar(16*cb, 16)
        return [M32(a, vr(BV+8*(j&1)+4*f, 4), vr(BP+8*(p&1)+4*f, 4), a) for f in range(2)]
    def brd(which, J):
        st, js = divmod(J, 8)
        base = (BK if which == 0 else BV) + 8*(J & 1)
        return [f"ds_read_b128 {vr(base+4*f,4)}, v{VCUR if st == 0 else VNXT} offset:{js*4096 + which*2048 + 1024*f}" for f in range(2)]
    def bblock(p, n, extra):
        qk = bQK(p + 2, n) if p + 2 >= 0 else []
        pv = bPV(p, n) if p >= 0 else []
        mf = [qk[0], pv[0], qk[1], pv[1]] if qk and pv else qk + pv
        ext = []
        if (p + 3) % n == 0 and p + 3 > 0: ext += brd(0, (p + 3) // n)
        if (p + 1) % n == 0 and p + 1 >= 0: ext += brd(1, (p + 1) // n)
        ext += extra
        if p + 1 >= 0:
            s = BS + 16*((p+1) & 1); d = BP + 8*((p+1) & 1)
            G4 = [[f"v_exp_f32 v{s+4*g+k}, v{s+4*g+k}" for k in range(4)] for g in range(4)]
            cv = [f"v_cvt_pk_bf16_f32 v{d+k}, v{s+2*k}, v{s+2*k+1}" for k in range(8)]
            ch = [[], [], [], []]; gi = 0
            nm = sum(1 for x in ext if not x.startswith("s_")); per = -(-nm // 4) if nm > 4 else 1; cnt = 0
            for x in ext:
                ch[min(gi, 3)].append(x)
                if not x.startswith("s_"):
                    cnt += 1
                    if cnt % per == 0: gi += 1
            gaps = [G4[0][:2] + ch[0] + G4[0][2:] + cv[0:1], G4[1][:2] + ch[1] + G4[1][2:] + cv[1:3], G4[2][:2] + ch[2] + G4[2][2:] + cv[3:5],
                    G4[3][:2] + ch[3] + G4[3][2:] + cv[5:8]]
        else: gaps = [ext, [], [], []]
        out = []
        for k in range(4):
            if k < len(mf): out.append(mf[k])
            out += gaps[k]
        return nopfix(out)
    bpre = P["bhead"] + P["bmax"] + P["bsel"]
    P["bcode"] = []; P["bpaths"] = []
    for nn in ns:
        lead = [f"L_B{nn}:", f"v_mov_b32 v{VCUR}, v{VL16}", f"v_add_u32 v{VNXT}, 0x8000, v{VL16}"]
        for p in range(-3, 0): lead += bblock(p, nn, [])
        lead = fin(bpre, lead)
        lead += ["s_waitcnt vmcnt(8)", "s_barrier"] + wave0(f"L_cf{nn}", ctxflag) + [f"s_add_u32 s33, s{sW8K}, 98304"]
        btop = [".p2align 6", f"L_Bloop{nn}:"]
        body = []
        for p in range(8 * nn):
            ex = []
            if p % nn == 0:
                k = p // nn
                if k == 0: ex.append("s_mov_b32 m0, s33")
                if k == 4: ex.append("s_add_u32 m0, s33, 4096")
                ex.append(f"buffer_load_dwordx4 v{VDMA}, s[16:19], s34 offen offset:{1024*(k&3)} lds")
                if k == 3: ex.append("s_add_u32 s34, s34, 4096")
                if k == 7: ex.append("s_add_u32 s34, s34, 28672")
            body += bblock(p, nn, ex)
        body += ["s_add_u32 s31, s38, 65536", "s_and_b32 s31, s31, 0x1ffff", f"s_add_u32 s33, s38, s{sW8K}", "s_add_u32 s38, s38, 32768", "s_and_b32 s38, s38, 0x1ffff",
                 f"v_mov_b32 v{VCUR}, v{VNXT}", f"v_add_u32 v{VNXT}, s31, v{VL16}", "s_sub_u32 s37, s37, 1", "s_waitcnt vmcnt(8) lgkmcnt(0)", "s_barrier"]
        body = fin(bpre + lead + btop, body)
        bbot = ["s_cmp_lg_u32 s37, 0", f"s_cbranch_scc1 L_Bloop{nn}", "s_branch L_epiB"]
        P["bcode"] += lead + btop + body + bbot
        P["bpaths"].append(lead + btop + body + bbot + btop + body + bbot)
    o = []; e = o.append
    e("L_epiB:")
    o.extend(stamp(8))
    e("s_nop 11")
    o.extend(vote_write(NMAX, lambda cb: 16*cb + 10, "L_B_chk"))
    e("s_mul_i32 s31, s42, 303104"); e("s_add_u32 s31, s31, 131072"); e("v_bfe_u32 v3, v2, 4, 1"); e("s_mov_b32 s33, 151552"); e("v_mul_lo_u32 v3, s33, v3")
    e("v_lshlrev_b32 v12, 4, v4"); e("v_add3_u32 v3, v3, v12, s31")
    e("v_lshrrev_b32 v12, 5, v2"); e("v_mul_u32_u24 v12, 5, v12"); e("s_mul_i32 s31, s43, 10"); e("v_add_u32 v12, s31, v12")
    for cb in range(NMAX):
        e(f"s_cmp_le_u32 s40, {cb}"); e("s_cbranch_scc1 L_B_st")
        tb = 64 + 32 * (cb & 1)
        e(f"v_rcp_f32 v13, v{T+cb}")
        for k in range(10): e(f"v_accvgpr_read_b32 v{tb+k}, a{16*cb+k}")
        for k in range(10): e(f"v_mul_f32 v{tb+k}, v{tb+k}, v13")
        for k in range(5):
            e(f"v_cvt_pk_bf16_f32 v{tb+10+k}, v{tb+2*k}, v{tb+2*k+1}")
            e(f"v_add_u32 v14, {10*cb+k}, v12"); e("v_lshrrev_b32 v15, 2, v14"); e("v_and_b32 v14, 3, v14")
            e("v_lshl_add_u32 v15, v15, 8, v3"); e(f"v_lshl_add_u32 v{tb+16+k}, v14, 2, v15")
            e(f"buffer_store_dword v{tb+10+k}, v{tb+16+k}, s[12:15], 0 offen{SC}")
    e("L_B_st:")
    e("s_waitcnt vmcnt(0) lgkmcnt(0)"); e("s_barrier")
    o.extend(vote_read("L_fbB"))
    o.extend(wave0("L_obf", [f"s_lshl_b32 s31, s{sH}, 7", f"s_lshl_b32 s33, s{sI}, 2", "s_add_u32 s31, s31, s33", f"s_add_u32 s31, s31, {FL_OB}"] + set_flag("s31")))
    o.extend(stamp(9))
    e("s_barrier")
    e("s_branch L_p4")
    e("L_fin0:")
    e("s_waitcnt vmcnt(0)"); e("s_barrier")
    o.extend(wave0("L_cf0", ctxflag))
    o.extend(stamp(8)); o.extend(stamp(9))
    P["epiB"] = o
    o = []; e = o.append
    e("L_fbA:")
    e("s_mov_b32 s39, 1"); e(f"s_lshl_b32 s10, s{sI}, 17"); e("s_add_u32 s10, s10, 131072")
    for cb in range(4): e(f"v_mov_b32 v{NM+4*cb}, {NEG}")
    e(f"s_lshl_b32 s31, s{sI}, 8"); e("v_lshlrev_b32 v3, 2, v5"); e("v_sub_u32 v3, v4, v3"); e("v_add_u32 v3, s31, v3")
    e(f"s_lshl_b32 s31, s{sW}, 4"); e("v_add_u32 v8, s31, v3"); e("v_add_u32 v10, 128, v8"); e("s_sub_u32 s31, 112, s31"); e("v_add_u32 v9, s31, v3"); e("v_add_u32 v11, 128, v9")
    e(f"s_lshl_b32 s37, s{sI}, 3"); e("s_add_u32 s37, s37, 8"); e("s_mov_b32 s33, 0"); e(f"v_mov_b32 v6, {NEG}")
    e("s_waitcnt vmcnt(0)")
    e("L_fbA_loop:")
    e("s_lshr_b32 s34, s33, 1"); e("s_lshl_b32 s34, s34, 15"); e("s_and_b32 s31, s33, 1"); e("s_lshl_b32 s31, s31, 13"); e("s_add_u32 s34, s34, s31")
    for f in range(8):
        if f == 4: e("s_add_u32 s34, s34, 4096")
        e(f"buffer_load_dwordx4 {vr(KB+4*f,4)}, v{VL16}, {KV}, s34 offen offset:{1024*(f&3)}{SC}")
    e("s_waitcnt vmcnt(0)")
    for cb in range(4):
        for ds in range(4):
            for t in range(2):
                d = vr(CL + 8*cb + 4*t, 4)
                e(M16(d, Kf(0, t, ds), vr(QR+16*cb+4*ds, 4), d if ds else "0"))
    e("s_nop 7"); e("s_lshl_b32 s31, s33, 5")
    for cb in range(4):
        for k in range(8):
            e(f"s_add_u32 s34, s31, {16*(k>>2)+(k&3)}"); e(f"v_cmp_gt_i32 vcc, s34, v{8+cb}"); e("s_nop 1")
            e(f"v_cndmask_b32 v7, v{CL+8*cb+k}, v6, vcc"); e(f"v_max_f32 v{NM+4*cb}, v{NM+4*cb}, v7")
    e("s_add_u32 s33, s33, 1"); e("s_cmp_lt_u32 s33, s37"); e("s_cbranch_scc1 L_fbA_loop")
    o.extend(fix_hazards(o, P["xl"]))
    e("s_barrier")
    e(f"s_lshl_b32 s35, s{sI}, 17")
    for s in range(4): o.extend(nopfix(kv_stage_static(s + 1)))
    e("s_waitcnt vmcnt(0)")
    e("s_branch L_att_start")
    e("L_wb:"); e("buffer_wbl2 sc1"); e("s_waitcnt vmcnt(0)"); e("s_branch L_wbd")
    P["fbA"] = o; o = []; e = o.append
    e("L_fbB:")
    e("s_mov_b32 s39, 1")
    for cb in range(NMAX): e(f"v_mov_b32 v{T+cb}, {NEG}"); e(f"v_mov_b32 v{BQ+8*cb+6}, 0"); e(f"v_mov_b32 v{BQ+8*cb+7}, 0")
    e("s_mov_b32 s34, 0")
    e("L_fbB_loop:")
    for f in range(2): e(f"buffer_load_dwordx4 {vr(BK+4*f,4)}, v{VL16}, s[16:19], s34 offen offset:{1024*f}")
    e("s_waitcnt vmcnt(0)")
    for cb in range(NMAX):
        d = vr(BS + 16*cb, 16)
        e(M32(d, vr(BK, 4), vr(BQ+8*cb, 4), "0")); e(M32(d, vr(BK+4, 4), vr(BQ+8*cb+4, 4), d))
    e("s_nop 11")
    for cb in range(NMAX):
        for k in range(0, 16, 2): e(f"v_max3_f32 v{T+cb}, v{T+cb}, v{BS+16*cb+k}, v{BS+16*cb+k+1}")
    e("s_add_u32 s34, s34, 4096"); e("s_cmp_lt_u32 s34, 262144"); e("s_cbranch_scc1 L_fbB_loop")
    o.extend(fix_hazards(o, bxl))
    e("s_barrier")
    o.extend(bd)
    e("s_waitcnt vmcnt(0)"); e("s_barrier")
    e("s_branch L_B_start")
    P["fbB"] = o
    return P

def gen_mega():
    p1, lp, q = phase12()
    P = phase3()
    code = p1 + lp + q
    code += P["head"] + P["rdA"] + P["mxA"] + P["dA"] + P["rdB"] + P["mxB"] + P["dB"] + P["loop"] + P["tail"]
    code += P["epi1"] + P["pref"] + P["epi2"] + P["pref2"] + P["bhead"] + P["bmax"] + P["bsel"] + P["bcode"] + P["epiB"]
    p4a, p4l, p4b = phase4_build()
    code += p4a + p4l + p4b
    check(P["epiB"] + p4a + p4l + p4l + p4b, "mega p4")
    code += P["spin"] + P["fbA"] + P["fbB"] + ["L_end:", "s_endpgm"]
    epi = P["epi1"] + P["pref"] + P["epi2"] + P["pref2"] + P["bhead"] + P["bmax"] + P["bsel"]
    for n in "AB":
        check(p1 + lp + lp + q + P["head"] + P["rd"+n] + P["mx"+n] + P["d"+n] + P["loop"] + P["loop"] + P["tail"] + epi
              + P["bpaths"][0] + P["epiB"], f"mega {n}")
    for n in "AB":
        D = P["d"+n]; cut = D.index("s_cbranch_scc1 L_epiA") + 1
        check(P["head"] + P["rd"+n] + P["mx"+n] + D[:cut] + P["epi1"] + P["epi2"] + P["bhead"], f"mega i0 {n}")
        ia = P["head"].index("L_att_start:")
        check(epi[:epi.index("s_cbranch_scc1 L_fbA")+1] + P["fbA"] + P["head"][ia:] + P["rd"+n] + P["d"+n], f"mega fbA {n}")
    for bp in P["bpaths"][1:]: check(epi + bp + P["epiB"], "mega B")
    ib = P["bhead"].index("L_B_start:")
    check(P["epiB"][:P["epiB"].index("s_cbranch_scc1 L_fbB")+1] + P["fbB"] + P["bhead"][ib:] + P["bsel"] + P["bpaths"][0], "mega fbB")
    if os.environ.get("DUMP"):
        open("m_q.txt", "w").write("\n".join(q)); open("m_dA.txt", "w").write("\n".join(P["dA"]))
        open("m_loop.txt", "w").write("\n".join(P["loop"]))
    return code
```

```python
WS_KV   = 0
WS_CTX  = 32 << 20
WS_WOF  = 52 << 20
WS_QB   = 59 << 20
WS_KVB  = 62 << 20
WS_FLAG = 63 << 20
WS_XCH  = 64 << 20
FL_CTX, FL_OB, FL_X, FL_P0 = 4096, 8192, 16384, 28672
WS_SIZE = 268435456
KA = dict(A_x=0, A_ckv=8, A_wq=16, A_wuk=24, A_wuv=32, A_wo=40, B_x=48, B_wq=56, B_wk=64, B_wv=72, B_wo=80, out=88, dbg=96, ws=104)
SZ = dict(A_x=2048*640*2, A_ckv=2048*512*2, A_wq=640*4096*2, A_wuk=512*4096*2, A_wuv=512*4096*2, A_wo=4096*640*2,
          B_x=2048*640*2, B_wq=640*640*2, B_wk=640*20*2, B_wv=640*20*2, B_wo=640*640*2, out=2048*1280*2)
import math
LOG2E = 1.4426950408889634
import struct
def f2u(x): return struct.unpack("<I", struct.pack("<f", x))[0]
def M16(d, a, b, c): return f"v_mfma_f32_16x16x32_bf16 {d}, {a}, {b}, {c}"
def M32(d, a, b, c): return f"v_mfma_f32_32x32x16_bf16 {d}, {a}, {b}, {c}"

def srd(dst, ptr, off_sreg, total, tmp=None):
    o = []
    if off_sreg is None or off_sreg == 0:
        o += [f"s_mov_b32 s{dst}, s{ptr}", f"s_and_b32 s{dst+1}, s{ptr+1}, 0xffff", f"s_mov_b32 s{dst+2}, {total}"]
    elif isinstance(off_sreg, int):
        o += [f"s_add_u32 s{dst}, s{ptr}, {off_sreg}", f"s_addc_u32 s{dst+1}, s{ptr+1}, 0", f"s_and_b32 s{dst+1}, s{dst+1}, 0xffff",
              f"s_mov_b32 s{dst+2}, {total - off_sreg}"]
    else:
        o += [f"s_add_u32 s{dst}, s{ptr}, {off_sreg}", f"s_addc_u32 s{dst+1}, s{ptr+1}, 0", f"s_and_b32 s{dst+1}, s{dst+1}, 0xffff",
              f"s_sub_u32 s{dst+2}, {total}, {off_sreg}"]
    o.append(f"s_mov_b32 s{dst+3}, 0x20000")
    return o

import os
STAMP = int(os.environ.get("STAMP", "0"))
WS_STAMP = 96 << 20
def stamp(i):
    if not STAMP: return []
    return [f"s_memrealtime s[{70+2*i}:{71+2*i}]", "s_memtime vcc", "s_waitcnt lgkmcnt(0)", f"s_mov_b32 s{71+2*i}, vcc_lo"]
def stamp_flush(kidx, n, ws_lo, wave_sreg, tag):
    if not STAMP: return []
    o = [f"s_cmp_lg_u32 {wave_sreg}, 0", f"s_cbranch_scc1 L_st_{tag}"]
    o += srd(60, ws_lo, WS_STAMP + kidx * 512 * 128, WS_SIZE)
    o += ["s_lshl_b32 s68, s2, 7", "v_mov_b32 v1, s68"]
    for i in range(n):
        o += [f"v_mov_b32 v2, s{70+2*i}", f"buffer_store_dword v2, v1, s[60:63], 0 offen offset:{4*i}"]
        o += [f"v_mov_b32 v3, s{71+2*i}", f"buffer_store_dword v3, v1, s[60:63], 0 offen offset:{4*i+64}"]
    o += ["s_waitcnt vmcnt(0)", f"L_st_{tag}:"]
    return o
```

```python
from asmlib import *
from common import *
import os
import p0
NB = [int(c) for c in os.environ.get("NB", "54320110")]
assert sum(NB) == 16
JG = p0.JG
def _order():
    import itertools
    idx = [i for i in range(8) if NB[i]]
    for r in range(1, len(idx)):
        for c in itertools.combinations(idx, r):
            if sum(NB[i] for i in c) == 8: return list(c) + [i for i in idx if i not in c]
    raise ValueError
PRE = [0] * 8
_acc = 0
for _i in _order(): PRE[_i] = _acc; _acc += NB[_i]
SLABBASE = [255, 0, 32, 64, 255, 96, 128, 255]
assert all(NB[i] for i in range(8) if SLABBASE[i] != 255)
PSZ = [int(x) for x in os.environ.get("PSZ", "14,16,17,21,18,16,4,22").split(",")]
PGRP = [[6, 7, 3, 2], [0, 1, 4, 5]]
PROW = [2, 3, 4, 5, 0, 1, 6, 7]
assert all(sum(PSZ[i] for i in g) == 64 for g in PGRP) and min(PSZ) >= 4
NMAX = max(NB)
NEG = f2u(-1e30)
SC = " sc1"
SPIN = 1 << 22
sH, sI, sW, sW8K = 28, 29, 30, 36
KV = "s[8:11]"; DBG = "s[24:27]"
QR = 64; KB = 128; SR = 192; PR = 208; NM = 216; ONES = 232; CL = 32
VL16 = 236; VL16H = 237; VL16HH = 239; VDMA = 238; VRD = 31; T = 240
AO = 0; AL = 128; AV = 144
VOTE = 163824
SLAB = 98304; PITCH = 1312

QST = os.environ.get("QST", "")
_stamp = stamp
def stamp(i):
    if QST and i > 0: return []
    return _stamp(i)
def qstamp(tag, i):
    return _stamp(i) if QST == tag else []
def nopfix(L):
    r = []
    for i, x in enumerate(L):
        r.append(x)
        if " m0," in x and i + 1 < len(L) and " lds" in L[i + 1]: r.append("s_nop 0")
    return r

XSL = [0, 32768, 65536]
WSL = [131072, 147456, 98304]
XF = 8
WFB = 64; WFN = 12
ET = 112
QXD, QWD, QXR, QWR, QL16, QFL = 40, 42, 44, 48, 56, 57
TA = 192
SLV = 204; SLF = 216
def kv_dma(k): return f"buffer_load_dwordx4 v{VDMA}, {KV}, s35 offen offset:{1024*(k&3)}{SC} lds"
def kv_stage_static(slot):
    L = []
    for k in range(8):
        if k % 4 == 0: L.append(f"s_add_u32 m0, s{sW8K}, {slot*32768 + (k//4)*4096}")
        L.append(kv_dma(k))
        if k % 4 == 3: L.append("s_add_u32 s35, s35, 4096" if k == 3 else "s_add_u32 s35, s35, 28672")
    return L
def q_dma(s):
    k = s % 3; L = []
    for half in range(2):
        L.append(f"s_add_u32 m0, s{sW8K}, {XSL[k] + 4096*half}")
        for j in range(4):
            if j % 2 == 0: L.append(f"s_mov_b32 s32, {s*128 + 40960*half + 9216*j}")
            L.append(f"buffer_load_dwordx4 v{QXD+(j&1)}, s[64:67], s32 offen offset:{1024*j}{QNT} lds")
    L.append(f"s_add_u32 m0, s39, {WSL[k]}")
    for j in range(4):
        L.append(f"s_mov_b32 s34, {s*524288 + 31744*j}")
        L.append(f"buffer_load_dwordx4 v{QWD+(j>>1)}, s[60:63], s34 offen offset:{1024*j}{QNT} lds")
    return L
def q_xr(s, ks, b, cb):
    return f"ds_read_b128 {vr(XF+16*b+4*cb,4)}, v{QXR+2*(cb&1)+ks} offset:{(XSL[s%3] & 65535) + (cb>>1)*16384}"
def q_wslot(t, dt): return WFB + 4 * ((8 * t + dt) % WFN)
def q_wr(t, dt):
    s, ks = divmod(t, 2)
    return [f"ds_read_b64_tr_b16 {vr(q_wslot(t,dt)+2*p,2)}, v{QWR+dt} offset:{WSL[s%3]-98304+8192*ks+1024*p}" for p in range(2)]
TOUCH = [f"v_add_u32 v{TA+2}, v{TA+2}, v{TA+3}", f"v_med3_i32 v{TA+5}, v{TA+2}, 0, v{TA+4}", f"v_add_co_u32 v{TA+6}, vcc, v{TA}, v{TA+5}",
         "NOP2", f"v_addc_co_u32 v{TA+7}, vcc, 0, v{TA+1}, vcc", f"global_load_dword v{TA+8}, {vr(TA+6,2)}, off{SC}"]

def wave0(lab, body):
    return [f"s_cmp_lg_u32 s{sW}, 0", f"s_cbranch_scc1 {lab}"] + body + [f"{lab}:"]
def set_flag(soff_sreg, imm=0):
    return ["v_mov_b32 v6, s100", "v_mov_b32 v7, 0", "s_mov_b64 exec, 1", f"buffer_store_dword v6, v7, {DBG}, {soff_sreg} offen offset:{imm}{SC}", "s_mov_b64 exec, -1"]
def wait_flags(lab, soff_sreg, mask):
    return [f"s_mov_b32 s34, {SPIN}", f"s_mov_b32 s33, {mask}", f"{lab}:", f"buffer_load_dword v8, v9, {DBG}, {soff_sreg} offen{SC}", "s_waitcnt vmcnt(0)",
            "v_cmp_eq_u32 vcc, s100, v8", "s_sub_u32 s34, s34, 1", "s_cselect_b32 s33, 0, s33", "s_andn2_b32 s31, s33, vcc_lo", f"s_cbranch_scc1 {lab}"]

def wait_all(lab, soff_sreg):
    return [f"s_mov_b32 s34, {SPIN}", f"{lab}:", f"buffer_load_dword v28, v29, {DBG}, {soff_sreg} offen{SC}", "s_waitcnt vmcnt(0)",
            "v_cmp_ne_u32 vcc, s100, v28", "s_sub_u32 s34, s34, 1", "s_cselect_b64 vcc, 0, vcc", "s_cmp_lg_u64 vcc, 0", f"s_cbranch_scc1 {lab}"]

def phase12():
    o = []; e = o.append
    e("s_cmp_ge_u32 s2, 256"); e("s_cbranch_scc1 L_end")
    e(f"s_load_dwordx4 s[56:59], s[0:1], {KA['A_x']}")
    e(f"s_load_dwordx2 s[42:43], s[0:1], {KA['A_wq']}")
    e(f"s_load_dwordx4 s[44:47], s[0:1], {KA['A_wuk']}")
    e(f"s_load_dwordx4 s[4:7], s[0:1], {KA['dbg']}")
    o.extend(stamp(0))
    e("v_lshrrev_b32 v1, 6, v0"); e("v_and_b32 v2, 63, v0")
    e(f"v_readfirstlane_b32 s{sW}, v1")
    e(f"s_and_b32 s{sH}, s2, 7"); e(f"s_lshl_b32 s{sH}, s{sH}, 2"); e("s_lshr_b32 s31, s2, 3"); e("s_and_b32 s31, s31, 3")
    e(f"s_add_u32 s{sH}, s{sH}, s31"); e(f"s_lshr_b32 s{sI}, s2, 5")
    e(f"s_or_b32 s31, s2, s{sW}"); e("s_cbranch_scc1 L_notag")
    e("s_memrealtime s[40:41]"); e("v_mov_b32 v61, 0"); e("s_waitcnt lgkmcnt(0)"); e("s_and_b32 s31, s40, 0xfffffff0"); e("s_or_b32 s31, s31, 8")
    o.extend(srd(24, 4, None, 256))
    e("v_mov_b32 v60, s31"); e("s_mov_b64 exec, 1"); e(f"buffer_store_dword v60, v61, {DBG}, 0 offen{SC}"); e("s_mov_b64 exec, -1")
    e("L_notag:")
    e(f"s_cmp_eq_u32 s{sI}, {JG}"); e("s_cbranch_scc1 L_jobG")
    e("L_main:")
    e("v_lshrrev_b32 v3, 3, v2"); e("v_and_b32 v4, 7, v2"); e("v_lshrrev_b32 v5, 4, v2")
    e(f"s_lshl_b32 s31, s{sW}, 16")
    e("v_lshlrev_b32 v3, 10, v3"); e("v_add_u32 v3, s31, v3")
    e("v_xor_b32 v6, v4, v5"); e("v_lshlrev_b32 v6, 4, v6"); e("v_xor_b32 v7, 64, v6")
    for j in range(4):
        e(f"v_add_u32 v{8+j}, v3, v{6+(j&1)}")
        if j: e(f"v_add_u32 v{8+j}, {7168*j}, v{8+j}")
    e("v_and_b32 v4, 15, v2")
    e(f"s_lshl_b32 s31, s{sW}, 17")
    e("v_lshlrev_b32 v3, 13, v5"); e("v_add_u32 v3, s31, v3")
    e("v_lshlrev_b32 v6, 1, v5"); e("v_xor_b32 v6, v4, v6"); e("v_lshlrev_b32 v6, 4, v6"); e("v_xor_b32 v7, 128, v6")
    for j in range(4):
        e(f"v_add_u32 v{12+j}, v3, v{6+(j>>1)}")
        if j: e(f"v_add_u32 v{12+j}, {31744*j}, v{12+j}")
    e(f"s_lshl_b32 s{sW8K}, s{sW}, 13"); e(f"s_add_u32 s35, s{sW8K}, 4096")
    e(f"s_lshl_b32 s39, s{sW}, 12"); e("s_add_u32 s38, s39, 49152"); e("s_add_u32 s37, s39, 32768")
    e("s_waitcnt lgkmcnt(0)")
    e(f"s_lshl_b32 s31, s{sI}, 18")
    o.extend(srd(12, 58, "s31", SZ['A_ckv']))
    e(f"s_lshl_b32 s3, s{sH}, 8")
    o.extend(srd(16, 44, "s3", SZ['A_wuk']))
    o.extend(srd(20, 46, "s3", SZ['A_wuv']))
    def dma_list(slot):
        L = []
        for half in range(2):
            L.append(f"s_add_u32 m0, s{(sW8K, 35)[half]}, {slot*65536}")
            for j in range(4): L.append(f"buffer_load_dwordx4 v{8+j}, s[12:15], s{32+half} offen offset:{1024*j} lds")
        for kv in range(2):
            L.append(f"s_add_u32 m0, s{37+kv}, {slot*65536}")
            for j in range(4): L.append(f"buffer_load_dwordx4 v{12+j}, s[{16+4*kv}:{19+4*kv}], s34 offen offset:{1024*j} lds")
        return L
    adv = ["s_add_u32 s32, s32, 128", "s_add_u32 s33, s33, 128", "s_add_u32 s34, s34, 524288"]
    e("s_mov_b32 s32, 0"); e("s_mov_b32 s33, 32768"); e("s_mov_b32 s34, 0")
    o.extend(nopfix(dma_list(0))); o.extend(adv)
    o.extend(nopfix(dma_list(1))); o.extend(adv)
    e(f"s_and_b32 s31, s{sH}, 3"); e("s_lshl_b32 s31, s31, 6"); e(f"s_lshl_b32 s40, s{sW}, 4"); e("s_add_u32 s31, s31, s40")
    e(f"s_lshl_b32 s40, s{sI}, 8"); e("s_add_u32 s31, s31, s40")
    e("v_and_b32 v6, 1, v2"); e("v_lshlrev_b32 v6, 7, v6")
    def grp(mask_lo, mask_hi, ptr, offreg, start, stride, mx):
        L = [f"s_mov_b32 exec_lo, {hex(mask_lo)}", f"s_mov_b32 exec_hi, {hex(mask_hi)}", f"v_mov_b32 v{TA+1}, s{ptr+1}",
             f"v_add_co_u32 v{TA}, vcc, s{ptr}, v{offreg}", f"v_mov_b32 v{TA+2}, {start & 0xffffffff}", f"v_mov_b32 v{TA+3}, {stride}",
             f"v_addc_co_u32 v{TA+1}, vcc, 0, v{TA+1}, vcc", f"v_mov_b32 v{TA+4}, {mx}"]
        return L
    e("v_add_u32 v3, s31, v2"); e("v_lshlrev_b32 v3, 10, v3")
    o.extend(grp(0xffff, 0, 58, 3, 128, 128, 896))
    e("s_mov_b64 exec, -1")
    e(f"s_lshl_b32 s40, s{sI}, 1"); e("s_lshr_b32 s40, 58596, s40"); e("s_and_b32 s40, s40, 3"); e("s_lshl_b32 s40, s40, 2"); e(f"s_add_u32 s40, s40, s{sW}")
    e("s_lshl_b32 s41, s40, 2"); e("v_bfe_u32 v3, v2, 1, 2"); e("v_add_u32 v3, s41, v3")
    e("v_lshlrev_b32 v3, 13, v3"); e("v_add3_u32 v3, v3, v6, s3")
    o.extend(grp(0xff0000, 0, 44, 3, 524288, 524288, 7*524288)); o.extend(grp(0xff000000, 0, 46, 3, 524288, 524288, 7*524288))
    e("s_mov_b64 exec, -1")
    e(f"s_lshl_b32 s31, s{sI}, 8"); e(f"s_lshl_b32 s41, s{sH}, 3"); e("s_add_u32 s31, s31, s41"); e(f"s_lshl_b32 s41, s{sW}, 1"); e("s_add_u32 s31, s31, s41")
    e("v_bfe_u32 v3, v2, 1, 1"); e("v_add_u32 v3, s31, v3"); e("v_mul_u32_u24 v3, 1280, v3"); e("v_add_u32 v3, v3, v6")
    o.extend(grp(0, 0xffff, 56, 3, -3*256, 256, 4*256))
    e("s_mov_b64 exec, -1")
    e("s_mul_i32 s40, s40, 40"); e("v_bfe_u32 v3, v2, 1, 3"); e("v_add_u32 v3, s40, v3")
    e("v_lshlrev_b32 v3, 13, v3"); e("v_add3_u32 v3, v3, v6, s3")
    o.extend(grp(0, 0xffff0000, 42, 3, -3*65536, 65536, 4*65536))
    e("v_mov_b32 v3, 0")
    e("s_mov_b64 exec, -1"); e("v_mov_b32 v3, 0")
    o.extend(grp(0, 0x8000, 4, 3, 0, 0, 0))
    e("s_mov_b64 exec, -1")
    if not os.environ.get("NOCODE"):
        e("s_getpc_b64 s[40:41]"); e("L_pc:"); e("s_lshr_b32 s31, s2, 3"); e("s_and_b32 s31, s31, 3"); e("s_lshl_b32 s31, s31, 2"); e(f"s_add_u32 s31, s31, s{sW}")
        e("s_lshl_b32 s31, s31, 13"); e("v_lshlrev_b32 v3, 7, v2"); e("v_add_u32 v3, s31, v3"); e("v_min_u32 v3, L_end-L_pc, v3")
        e(f"global_load_dword v{TA+10}, v3, s[40:41]")
    o.extend([x if x != "NOP2" else "s_nop 1" for x in TOUCH])
    o.extend(srd(24, 6, WS_FLAG, WS_FLAG + 65536))
    e(f"s_lshl_b32 s31, s{sH}, 7"); e("v_and_b32 v3, 7, v2"); e("v_lshlrev_b32 v3, 2, v3"); e(f"v_add_u32 v{QFL}, s31, v3")
    e(f"s_mul_i32 s31, s{sI}, 327680")
    o.extend(srd(64, 56, "s31", SZ['A_x']))
    o.extend(srd(60, 42, "s3", SZ['A_wq']))
    e(f"s_lshl_b32 s31, s{sH}, 20")
    o.extend(srd(8, 6, "s31", 32 << 20))
    e(f"s_and_b32 s40, s{sW}, 1"); e(f"s_lshr_b32 s41, s{sW}, 1")
    e("s_lshl_b32 s31, s40, 13")
    e("v_lshlrev_b32 v3, 7, v4"); e("v_add_u32 v3, s31, v3")
    e("v_lshrrev_b32 v6, 1, v4"); e("v_xor_b32 v6, v5, v6"); e("v_lshlrev_b32 v6, 4, v6")
    e("v_add_u32 v16, v3, v6"); e("v_xor_b32 v17, 64, v16")
    e("v_add_u32 v18, 0x10000, v16"); e("v_add_u32 v19, 0x10000, v17")
    e("v_lshrrev_b32 v3, 2, v2"); e("v_and_b32 v3, 3, v3")
    e("v_and_b32 v6, 1, v5"); e("v_lshlrev_b32 v6, 2, v6"); e("v_or_b32 v6, v6, v3")
    e("v_lshlrev_b32 v7, 3, v5"); e("v_add_u32 v7, v7, v3"); e("v_lshlrev_b32 v7, 8, v7")
    e("v_and_b32 v3, 3, v2"); e("v_lshlrev_b32 v3, 3, v3"); e("v_add_u32 v7, v7, v3")
    e("v_lshlrev_b32 v6, 5, v6")
    for dt in range(8):
        e(f"v_xor_b32 v3, {dt*32}, v6"); e(f"v_add_u32 v{QWR+dt}, v7, v3"); e(f"v_add_u32 v{QWR+dt}, 98304, v{QWR+dt}")
    e("s_lshl_b32 s31, s41, 7"); e("v_xor_b32 v6, s31, v6")
    for q in range(4):
        e(f"v_xor_b32 v3, {q*32}, v6"); e(f"v_add_u32 v{20+q}, v7, v3"); e(f"v_add_u32 v{20+q}, 32768, v{20+q}"); e(f"v_add_u32 v{24+q}, 0x10000, v{20+q}")
    e("v_lshrrev_b32 v3, 3, v2"); e("v_and_b32 v6, 7, v2"); e(f"s_mul_i32 s31, s{sW}, 81920")
    e("v_mul_u32_u24 v3, 1280, v3"); e("v_add_u32 v3, s31, v3"); e("v_xor_b32 v6, v6, v5"); e("v_lshlrev_b32 v6, 4, v6")
    e(f"v_add_u32 v{QXD}, v3, v6"); e("v_xor_b32 v6, 64, v6"); e(f"v_add_u32 v{QXD+1}, v3, v6"); e(f"v_add_u32 v{QXD+1}, 9216, v{QXD+1}")
    e(f"v_mov_b32 v{QWD}, v12"); e(f"v_subrev_u32 v{QWD+1}, 63488, v14")
    e("v_lshrrev_b32 v6, 1, v4"); e("v_xor_b32 v6, v5, v6"); e("v_lshlrev_b32 v6, 4, v6"); e("v_lshlrev_b32 v3, 7, v4"); e("v_add_u32 v3, v3, v6")
    e(f"s_lshl_b32 s31, s{sW}, 11"); e(f"v_add_u32 v{QXR}, s31, v3"); e(f"v_xor_b32 v{QXR+1}, 64, v{QXR}")
    e("s_sub_u32 s31, 14336, s31"); e(f"v_add_u32 v{QXR+2}, s31, v3"); e(f"v_xor_b32 v{QXR+3}, 64, v{QXR+2}")
    e(f"v_lshlrev_b32 v{QL16}, 4, v2")
    e("s_lshl_b32 s31, s41, 11"); e("s_lshl_b32 s43, s40, 15"); e("s_add_u32 s43, s43, s31")
    e("s_add_u32 s31, s43, 32768"); e(f"v_add_u32 v58, s31, v{QL16}"); e("v_add_u32 v59, 0x10000, v58")
    e(f"s_lshl_b32 s31, s{sI}, 17"); e("s_add_u32 s43, s43, s31")
    e("s_lshl_b32 s31, s41, 11"); e("v_add_u32 v62, s31, v58"); e("v_add_u32 v63, s31, v59"); e("s_add_u32 s42, s43, s31")
    e(f"s_mov_b32 s44, {f2u(LOG2E / 128 ** 0.5)}")
    e(f"s_cmp_eq_u32 s{sI}, {JG}"); e("s_cbranch_scc1 L_jobG_out")
    e("L_jobG_ret:")
    for r in range(256): e(f"v_accvgpr_write_b32 a{r}, 0")
    def reads(slot, ks, buf):
        L = []; base = 64 + 64 * buf
        for t in range(8):
            L.append(f"ds_read_b128 {vr(base+4*t,4)}, v{16+2*slot+ks} offset:{2048*t + (8192 if t >= 4 else 0)}")
            for part in range(2):
                L.append(f"ds_read_b64_tr_b16 {vr(base+32+4*t+2*part,2)}, v{20+4*slot+(t&3)} offset:{16384*(t>>2)+8192*ks+1024*part}")
        return L
    e(f"s_cmp_eq_u32 s{sI}, {JG}"); e("s_cbranch_scc1 L_first6")
    e(f"s_waitcnt vmcnt({17 if os.environ.get('NOCODE') else 18})"); e("s_barrier")
    e("L_first:")
    o.extend(stamp(1))
    o.extend(reads(0, 0, 0))
    e("s_mov_b32 s45, 0")
    pre = o
    def mf(buf):
        base = 64 + 64 * buf; L = []
        order = sorted(((dt, kt) for dt in range(8) for kt in range(8)), key=lambda p: (max(p), p))
        for (dt, kt) in order:
            acc = ar((dt*8+kt)*4, 4); c = vr(base+4*kt, 4); w = vr(base+32+4*dt, 4)
            L.append(M16(acc, w, c, acc) if dt < 4 else M16(acc, c, w, acc))
        return L
    def stage(slot, vm, rd_next, dm, dstep=3, extra=None, extra0=()):
        L = ["s_waitcnt lgkmcnt(0)"]
        L += interleave2(mf(0), [[(2*k, x) for k, x in enumerate(reads(slot, 1, 1))], list(extra0)], 8, std_cost)
        L.append(f"s_waitcnt vmcnt({vm}) lgkmcnt(0)")
        m = mf(1)
        L += m[:1]; L.append("s_barrier")
        fill = [(2*k, x) for k, x in enumerate(rd_next)]
        pos = 1; dl = []
        for x in dm:
            if x == "NOP2": pos += 2; continue
            dl.append((pos, x)); pos += dstep if x.startswith("buffer") else 0.4
        return L + nopfix(interleave(m[1:], sorted(fill + dl + (extra or []), key=lambda t: t[0]), 8, std_cost))
    tpre = [x for x in TOUCH[:-1] if x != "NOP2"]
    tld = lambda slot: [TOUCH[-1].replace(f"v{TA+8},", f"v{TA+9-slot},")]
    P1D = float(os.environ.get("P1D", "3.3"))
    spaced = lambda L, p0, d: [(p0 + d*k, x) for k, x in enumerate(L)]
    loop = []
    for slot in range(2): loop += stage(slot, 1, reads(1 - slot, 0, 0), dma_list(slot) + tld(slot) + adv, P1D, None, spaced(tpre, 3, 4))
    top = [".p2align 6", "L_p1loop:"]
    if QST == "p1":
        idx = [i for i, x in enumerate(loop) if x == "s_waitcnt lgkmcnt(0)"]
        un = []
        for it in range(3): un += [loop[0]] + _stamp(1 + 2*it) + loop[1:idx[1] + 1] + _stamp(2 + 2*it) + loop[idx[1] + 1:]
        loop = un + ["s_mov_b32 s45, 2"]
    bot = ["s_add_u32 s45, s45, 1", "s_cmp_lg_u32 s45, 3", "s_cbranch_scc1 L_p1loop"]
    o = []; e = o.append
    o += qstamp("p1", 7) + stage(0, 1, reads(1, 0, 0), q_dma(0) + q_dma(1), 2.1) + qstamp("p1", 8)
    o += [f"v_readlane_b32 s100, v{TA+9}, 47", "s_nop 0", "s_cmp_eq_u32 s100, 0", "s_cbranch_scc1 L_tagspin", "L_tagok:"]
    q0 = [q_xr(0, 0, 0, cb) for cb in range(4)] + [x for dt in range(8) for x in q_wr(0, dt)]
    o += stage(1, 12, q0, q_dma(2), 3) + qstamp("p1", 9)
    o.extend(stamp(2))
    groups = []
    n = 0
    for st in range(2):
        for kvp in range(2):
            for f in range(8):
                if kvp == 0:
                    q, z = divmod(f, 2); kt = 4*st + q; t0 = ((2*z)*8 + kt)*4; t1 = ((2*z+1)*8 + kt)*4; off = q*4096 + z*1024
                else:
                    b, qd = divmod(f, 4); ksp = 2*st + b; t0 = ((4+qd)*8 + 2*ksp)*4; t1 = t0 + 4; off = 16384 + b*8192 + qd*1024
                ob = ET + 8 + 4 * (n & 1); n += 1
                g = [f"v_accvgpr_read_b32 v{ET+r}, a{t0+r}" for r in range(4)] + [f"v_accvgpr_read_b32 v{ET+4+r}, a{t1+r}" for r in range(4)]
                if kvp == 0: g += [f"v_mul_f32 v{ET+r}, s44, v{ET+r}" for r in range(8)]
                g += [f"v_cvt_pk_bf16_f32 v{ob+r}, v{ET+2*r}, v{ET+2*r+1}" for r in range(4)]
                g += [f"v_accvgpr_write_b32 a{t0+r}, v{ob+r}" for r in range(4)]
                so = st*65536 + (off & ~4095)
                stv = [f"s_add_u32 s46, s{43 if kvp == 0 else 42}, {so}"] if (off & 4095) == 0 else []
                stv.append(f"buffer_store_dwordx4 {ar(t0,4)}, v{QL16}, {KV}, s46 offen offset:{off & 4095}{STSC}")
                groups.append((g, stv, f"ds_write_b128 v{(58, 62)[kvp] + st}, {ar(t0,4)} offset:{off}"))
    def bump(s):
        cur = XSL[s % 3] >= 65536; prev = XSL[(s - 1) % 3] >= 65536 if s else False
        if cur == prev: return []
        return [f"v_add_u32 v{QXR+k}, {'0x10000' if cur else '0xffff0000'}, v{QXR+k}" for k in range(4)]
    vmq = ["q1"]*12 + ["q2"]*12
    def vmwait(tag):
        idx = max(i for i, x in enumerate(vmq) if x == tag)
        return len(vmq) - 1 - idx
    conv = [(gi, x) for gi, g in enumerate(groups) for x in g[0]]
    done = 0
    sti = 0; dwi = 0; carry = []
    ST0 = int(os.environ.get("ST0", "14")); STN = int(os.environ.get("STN", "6"))
    for t in range(20):
        s, ks = divmod(t, 2); b = t & 1
        m = [M16(vr(128+(dt*4+cb)*4,4), vr(q_wslot(t,dt),4), vr(XF+16*b+4*cb,4), "0" if t == 0 else vr(128+(dt*4+cb)*4,4))
             for dt in range(8) for cb in range(4)]
        rd = []; dm = []; tag = None
        if ks == 0:
            if QST == "q": e("s_waitcnt lgkmcnt(0)")
            o.extend(qstamp("q", s + 1))
        else:
            BP = int(os.environ.get("QBP", "4"))
            o.extend(m[:BP]); m = m[BP:]
            e(f"s_waitcnt vmcnt({vmwait(f'q{s+1}')}) lgkmcnt(0)" if s < 9 else "s_waitcnt lgkmcnt(0)")
            e("s_barrier")
            if s <= 6: dm = q_dma(s + 3); tag = f"q{s+3}"
        if t < 19:
            s2, ks2 = divmod(t + 1, 2)
            off = 0 if ks == 0 else -BP
            for x in (bump(s2) if ks2 == 0 else []): rd.append((0, x))
            g = 0
            for dt in range(8):
                if dt == 1:
                    for cb in range(4): rd.append((g, q_xr(s2, ks2, 1 - b, cb))); g += 1
                g = max(g, 4 * (dt - 4) + 3 + off)
                for x in q_wr(t + 1, dt): rd.append((g, x)); g += 1
        if dm:
            cut = [i for i, x in enumerate(dm) if x.startswith("buffer")][6]
            while dm[cut - 1].startswith("s_"): cut -= 1
            carry = dm[cut:]; dm = dm[:cut]; ctag = tag
        elif ks == 0 and t > 0 and carry:
            dm = carry; carry = []; tag = ctag
        dl = []
        pos = 1.0
        for x in dm:
            dl.append((pos, x)); pos += 0.4 if x.startswith("s_") else 3.6
        mem = []
        if t >= ST0:
            k = min(done, sti + STN) if t < 19 else 32
            assert done >= k
            for gi in range(sti, k): mem += groups[gi][1]
            sti = k
        lim = 16 if t in (17, 18) else (32 if t == 19 else 0)
        k = min(lim, dwi + 8) if t < 19 else 32
        dws = [groups[gi][2] for gi in range(dwi, k)]; dwi = max(dwi, k)
        assert done >= dwi
        sl = [(2.0 + k * (len(m) - 3.0) / max(1, len(mem)), x) for k, x in enumerate(mem)]
        dw = [(0.6 + k * (len(m) - 2.0) / max(1, len(dws)), x) for k, x in enumerate(dws)]
        room = max(0, 2 * len(m) - len(rd) - len(dl) - len(sl) - len(dw) + int(os.environ.get("QRM", "5")))
        if t >= 17: room = len(conv) if t == 18 else room
        take = conv[:room]; conv = conv[room:]
        done = conv[0][0] if conv else 32
        seg = nopfix(interleave2(m, [rd, dl, sl, dw, [(0, x) for gi, x in take]], 8, std_cost))
        for x in seg:
            if x.startswith("buffer_store"): vmq.append("st")
            elif x.startswith("buffer_load_dword "): vmq.append("census")
            elif x.startswith("buffer_load"): vmq.append(tag)
        o.extend(seg)
        if os.environ.get("DUMP"): print("qstep", t, "instrs beyond mfma", len(seg) - len(m), "done", done, "stores", sti, "dsw", dwi)
    assert not conv and sti == 32 and dwi == 32
    o.extend(stamp(4))
    e(f"v_add_u32 v1, s{sW8K}, v{QL16}"); e(f"v_mov_b32 v24, v{QL16}"); e(f"v_mov_b32 v26, v{QFL}")
    for cb in range(4):
        for ds in range(4):
            for k in range(4):
                a = 128 + ((2*ds + (k >> 1))*4 + cb)*4 + 2*(k & 1)
                e(f"v_cvt_pk_bf16_f32 v{QR+16*cb+4*ds+k}, v{a}, v{a+1}")
    rest = fin(pre + top + loop + bot, o)
    return pre, top + loop + bot, rest

sKQ, sRB, sCQ, sTILE, sRH, sCH, sCNT, sWO, sXO, sWL, sXL, sPEND = 48, 49, 50, 51, 52, 53, 55, 58, 59, 38, 46, 45
SLOT = 36864; STG = 3 * SLOT; NST = -(-5 * NMAX // 4)
def p4_setup(tag):
    o = []; e = o.append
    e(f"s_load_dwordx2 s[60:61], s[0:1], {KA['out']}")
    e("s_and_b32 s31, s2, 7"); e(f"s_lshr_b32 s{sKQ}, s31, 1"); e("s_and_b32 s31, s31, 1"); e(f"s_lshl_b32 s{sRB}, s31, 3")
    tabs = []
    for kq in range(4):
        t = 0
        for i in range(8):
            g = 0 if i in PGRP[0] else 1; pos = PGRP[g].index(i); a4 = (pos - kq) & 3
            t |= sum(PSZ[PGRP[g][(a4 + k) & 3]] for k in range(kq)) << (8 * i)
        tabs.append(t)
    e(f"s_mov_b32 s56, {tabs[0] & 0xffffffff}"); e(f"s_mov_b32 s57, {tabs[0] >> 32}")
    for kq in range(1, 4):
        e(f"s_cmp_eq_u32 s{sKQ}, {kq}"); e(f"s_cselect_b32 s56, {tabs[kq] & 0xffffffff}, s56"); e(f"s_cselect_b32 s57, {tabs[kq] >> 32}, s57")
    e(f"s_lshl_b32 s31, s{sI}, 3"); e("s_lshr_b64 s[56:57], s[56:57], s31"); e("s_and_b32 s54, s56, 255")
    t = sum(PSZ[i] << (8 * i) for i in range(8))
    e(f"s_mov_b32 s56, {t & 0xffffffff}"); e(f"s_mov_b32 s57, {t >> 32}"); e("s_lshr_b64 s[56:57], s[56:57], s31"); e(f"s_and_b32 s{sCNT}, s56, 255")
    t = sum(((0 if i in PGRP[0] else 4) + PGRP[0 if i in PGRP[0] else 1].index(i)) << (4 * i) for i in range(8))
    e(f"s_lshl_b32 s31, s{sI}, 2"); e(f"s_lshr_b32 s31, {t}, s31"); e(f"s_sub_u32 s32, s31, s{sKQ}"); e("s_and_b32 s32, s32, 3"); e("s_and_b32 s31, s31, 4"); e("s_or_b32 s31, s31, s32")
    e("s_lshl_b32 s31, s31, 2"); e(f"s_lshr_b32 s31, {sum(PROW[k] << (4*k) for k in range(8))}, s31"); e("s_and_b32 s31, s31, 7"); e(f"s_add_u32 s{sRB}, s{sRB}, s31")
    e(f"s_and_b32 s{sCQ}, s{sH}, 3")
    e(f"s_lshl_b32 s{sTILE}, s{sRB}, 2"); e(f"s_add_u32 s{sTILE}, s{sTILE}, s{sCQ}")
    e(f"s_and_b32 s{sRH}, s{sW}, 1"); e(f"s_lshr_b32 s{sCH}, s{sW}, 1")
    e("v_and_b32 v9, 31, v2"); e("v_lshlrev_b32 v9, 2, v9")
    e(f"s_lshr_b32 s62, s{sRB}, 1"); e("s_lshl_b32 s62, s62, 7"); e(f"s_add_u32 s62, s62, {FL_CTX}")
    o.extend(wave0(f"L_p4i{tag}", [f"s_mov_b32 s32, {FL_P0 + 1024}", f"buffer_load_dwordx4 v[20:23], v{VL16}, {DBG}, s32 offen{SC}",
                                   f"buffer_load_dword v24, v9, {DBG}, s62 offen{SC}"]))
    e("s_lshr_b32 s31, s54, 1"); e(f"s_add_u32 s32, s54, s{sCNT}"); e("s_add_u32 s32, s32, 1"); e("s_lshr_b32 s32, s32, 1"); e("s_sub_u32 s32, s32, s31"); e("s_bfm_b32 s63, s32, s31")
    e(f"s_lshl_b32 s31, s{sCQ}, 1"); e(f"s_add_u32 s31, s31, s{sCH}"); e("s_mul_i32 s31, s31, 148"); e("s_lshl_b32 s32, s54, 1"); e("s_add_u32 s31, s31, s32")
    e(f"s_add_u32 s31, s31, s{sRH}"); e(f"s_mul_i32 s{sWO}, s31, 5120")
    e(f"s_lshl_b32 s31, s{sRB}, 3"); e(f"s_lshl_b32 s33, s{sW}, 1"); e("s_add_u32 s31, s31, s33"); e("s_mul_i32 s31, s31, 148"); e("s_add_u32 s31, s31, s32"); e(f"s_lshl_b32 s{sXO}, s31, 10")
    return o
def p4_check():
    slab = ["v_xor_b32 v20, s100, v20", "v_xor_b32 v21, s100, v21", "v_xor_b32 v22, s100, v22", "v_xor_b32 v23, s100, v23", "v_or3_b32 v20, v20, v21, v22",
            "v_or_b32 v20, v20, v23", "v_cmp_ne_u32 vcc, 0, v20", "v_cmp_eq_u32 s[56:57], s100, v24", "s_nop 0", "s_andn2_b32 s31, s63, s56", "s_or_b32 s31, s31, vcc_lo"]
    main = wave0("L_p4ok", ["s_waitcnt vmcnt(0)"] + slab + ["s_cbranch_scc1 L_p4slow"])
    slow = ["L_p4slow:", f"s_mov_b32 s34, {SPIN}", f"s_mov_b32 s32, {FL_P0 + 1024}", "L_p4slowl:", f"buffer_load_dwordx4 v[20:23], v{VL16}, {DBG}, s32 offen{SC}",
            f"buffer_load_dword v24, v9, {DBG}, s62 offen{SC}", "s_sub_u32 s34, s34, 1", "s_cbranch_scc1 L_p4ok", "s_waitcnt vmcnt(0)"] + slab + ["s_cbranch_scc1 L_p4slowl", "s_branch L_p4ok"]
    return main, slow

def phase4():
    o = []; e = o.append
    e("L_p4:")
    o.extend(srd(16, 6, WS_WOF, WS_WOF + 8 * 757760))
    e(f"v_mov_b32 v3, v{VL16}"); e(f"v_add_u32 v12, 4096, v{VL16}"); e(f"v_mov_b32 v10, v{VL16}"); e(f"v_add_u32 v11, 149504, v{VL16}")
    e(f"s_mul_i32 s{sWL}, s{sW}, 5120"); e(f"s_add_u32 s{sWL}, s{sWL}, 16384"); e(f"s_lshl_b32 s{sXL}, s{sW}, 12")
    def wdma(slot):
        return ([f"s_add_u32 m0, s{sWL}, {slot*SLOT}"] + [f"buffer_load_dwordx4 v3, s[16:19], s{sWO} offen offset:{1024*k}{SC} lds" for k in range(4)]
                + [f"s_add_u32 m0, s{sWL}, {slot*SLOT+4096}", f"buffer_load_dwordx4 v12, s[16:19], s{sWO} offen{SC} lds", f"s_add_u32 s{sWO}, s{sWO}, 10240"])
    def xdma(slot):
        return ([f"s_add_u32 m0, s{sXL}, {slot*SLOT}"] + [f"buffer_load_dwordx4 v{10+(k>>1)}, s[12:15], s{sXO} offen offset:{1024*k}{SC} lds" for k in range(4)]
                + [f"s_add_u32 s{sXO}, s{sXO}, 2048"])
    for sl in range(3): o.extend(nopfix(wdma(sl) + xdma(sl)))
    e(f"s_lshl_b32 s31, s{sW}, 10"); e(f"s_add_u32 s31, s31, {STG}"); e(f"v_add_u32 v13, s31, v{VL16}")
    for k in range(NST): e(f"ds_read_b128 {vr(32+4*k,4)}, v13 offset:{4096*k}")
    e("v_bfe_u32 v13, v2, 4, 1"); e("s_mov_b32 s33, 151552"); e("v_mul_lo_u32 v13, s33, v13"); e("v_lshlrev_b32 v14, 4, v4"); e("v_lshrrev_b32 v15, 5, v2"); e("v_lshlrev_b32 v15, 8, v15")
    e("v_add3_u32 v13, v13, v14, v15")
    e(f"s_mul_i32 s31, s{sW}, s40"); e("s_sub_u32 s31, s43, s31"); e("s_mul_i32 s31, s31, 640"); e("s_mul_i32 s32, s42, 303104"); e("s_add_u32 s31, s31, s32")
    e(f"s_lshl_b32 s32, s{sW}, 9"); e("s_add_u32 s31, s31, s32"); e("s_add_u32 s31, s31, 131072"); e("s_mul_i32 s32, s40, 5"); e(f"s_sub_u32 s32, s32, s{sW}")
    for j in range(4):
        e(f"s_add_u32 s33, s{sKQ}, {j}"); e("s_and_b32 s33, s33, 3"); e(f"s_lshl_b32 s34, s{sRH}, 2"); e("s_add_u32 s33, s33, s34"); e("s_lshl_b32 s33, s33, 11")
        e(f"v_add_u32 v{16+j}, s33, v3")
    e(f"s_mul_i32 s33, s{sCH}, 10240"); e("s_add_u32 s33, s33, 16384"); e("v_add_u32 v20, s33, v3")
    for k in range(5): e(f"v_add_u32 v{21+k}, {2*SLOT}, v{16+k}")
    e("s_waitcnt lgkmcnt(0)")
    for k in range(NST):
        e(f"s_cmp_gt_i32 s32, {4*k}"); e("s_cselect_b32 s33, s31, 0x7fff0000")
        e(f"buffer_store_dwordx4 {vr(32+4*k,4)}, v13, s[12:15], s33 offen{SC}"); e("s_add_u32 s31, s31, 2048")
    for r in range(160): e(f"v_accvgpr_write_b32 a{r}, 0")
    e(f"s_cmp_eq_u32 s{sW}, 0"); e(f"s_cselect_b32 s{sPEND}, s40, 0")
    e(f"s_lshl_b32 s62, s{sH}, 7"); e(f"s_add_u32 s62, s62, {FL_OB}"); e(f"s_mov_b32 s63, {FL_P0 + 1024 + 512}")
    look = [f"buffer_load_dword v8, v9, {DBG}, s62 offen{SC}", f"buffer_load_dword v26, v9, {DBG}, s63 offen{SC}"]
    o.extend(stamp(10))
    FB = 32
    def reads(slot, st, b):
        base = FB + 36 * b; hi = 5 * (slot >> 1); so = (slot & 1) * SLOT
        X = [f"ds_read_b128 {vr(base+4*j,4)}, v{16+hi+j} offset:{so+st*1024}" for j in range(4)]
        W = [f"ds_read_b128 {vr(base+16+4*nt,4)}, v{20+hi} offset:{so+st*5120+nt*1024}" for nt in range(5)]
        return [W[0]] + X + W[1:]
    def mf(b):
        base = FB + 36 * b
        return [M16(ar((j*5+nt)*4,4), vr(base+16+4*nt,4), vr(base+4*j,4), ar((j*5+nt)*4,4)) for nt in range(5) for j in range(4)]
    e(f"s_waitcnt vmcnt({18 + NST})"); e("s_barrier")
    o.extend(reads(0, 0, 0)); o.extend(wave0("L_p4l0", look)); o.extend(nopfix(wdma(3)))
    e("s_waitcnt lgkmcnt(0)")
    pre = o
    top = [".p2align 6", "L_p4loop:"]
    loop = []
    for sl in range(4):
        prev = xdma((sl - 1) & 3)
        loop += nopfix(interleave2(mf(0), [[(2*k, x) for k, x in enumerate(reads(sl, 1, 1))], [(1 + 3.5*k if k else 0, x) for k, x in enumerate(prev)]], 8, std_cost))
        m = mf(1)
        loop += m[:2] + ["s_waitcnt vmcnt(18) lgkmcnt(0)", "s_barrier"]
        ex = [f"s_cmp_le_u32 s{sCNT}, 4", "s_cselect_b32 s14, 0, s14", "s_cselect_b32 s18, 0, s18", f"s_sub_u32 s{sCNT}, s{sCNT}, 1"]
        pos = 0.0; dl = []
        for x in ex + wdma(sl):
            dl.append((pos, x)); pos += 0.5 if x.startswith("s_") else 3
        loop += nopfix(interleave2(m[2:], [[(2*k, x) for k, x in enumerate(reads((sl + 1) & 3, 0, 0))], dl], 8, std_cost))
        loop += [f"s_cmp_eq_u32 s{sCNT}, 0", "s_cbranch_scc1 L_p4x"]
    loop = fin(pre + top + fin(pre + top, loop), loop)
    obflag = [f"s_mov_b32 s{sPEND}, 0", f"s_lshl_b32 s31, s{sH}, 7", f"s_lshl_b32 s33, s{sI}, 2", "s_add_u32 s31, s31, s33", f"s_add_u32 s31, s31, {FL_OB}"] + set_flag("s31")
    bot = [f"s_cmp_lg_u32 s{sW}, 0", "s_cbranch_scc1 L_p4loop"] + look + [f"s_cmp_eq_u32 s{sPEND}, 0", "s_cbranch_scc1 L_p4loop"] + obflag + ["s_branch L_p4loop"]
    o = []; e = o.append
    e("L_p4x:")
    o.extend(stamp(11))
    obm = sum(1 << i for i in range(8) if NB[i])
    chk = ["s_waitcnt vmcnt(0)", "v_cmp_eq_u32 vcc, s100, v8", "v_cmp_eq_u32 s[56:57], s100, v26", f"s_mov_b32 s33, {obm}", "s_andn2_b32 s31, s33, vcc_lo",
           "s_andn2_b32 s33, 0xfffff, s56", "s_or_b32 s31, s31, s33"]
    o.extend(wave0("L_p4w2", [f"s_cmp_eq_u32 s{sPEND}, 0", "s_cbranch_scc1 L_p4np"] + obflag + ["L_p4np:"] + chk + ["s_cbranch_scc0 L_p4w2", f"s_mov_b32 s34, {SPIN}", "L_p4s2:"]
                   + look + ["s_sub_u32 s34, s34, 1", "s_cbranch_scc1 L_p4w2"] + chk + ["s_cbranch_scc1 L_p4s2"]))
    e(f"s_mov_b32 s14, {128*148*1024}"); e(f"s_mov_b32 s18, {8*757760}")
    e(f"s_mul_i32 s47, s{sI}, 757760"); e(f"s_mul_i32 s31, s{sW}, 25600"); e("s_add_u32 s47, s47, s31"); e("s_add_u32 s47, s47, 655360")
    for j in range(4):
        e(f"s_add_u32 s31, s{sW}, {j}"); e("s_and_b32 s31, s31, 3"); e("s_mul_i32 s31, s31, 151552"); e(f"v_add_u32 v{16+j}, s31, v3")
    e(f"s_mul_i32 s46, s{sH}, 606208"); e(f"s_mul_i32 s31, s{sW}, 5120"); e("s_add_u32 s46, s46, s31"); e("s_add_u32 s46, s46, 131072")
    o.extend(qstamp("t", 1))
    e("s_waitcnt vmcnt(0) lgkmcnt(0)"); e("s_barrier")
    o.extend(qstamp("t", 2))
    RB = 32
    for st in range(5):
        for nt in range(5):
            e(f"buffer_load_dwordx4 {vr(RB+36*st+16+4*nt,4)}, v3, s[16:19], s47 offen offset:{1024*nt}{SC}" if nt < 4 else
              f"buffer_load_dwordx4 {vr(RB+36*st+32,4)}, v12, s[16:19], s47 offen{SC}")
        e("s_add_u32 s47, s47, 5120")
        for j in range(4): e(f"buffer_load_dwordx4 {vr(RB+36*st+4*j,4)}, v{16+j}, s[12:15], s46 offen offset:{1024*st if st < 4 else 0}{SC}")
        if st == 3: e("s_add_u32 s46, s46, 4096")
    o.extend(qstamp("t", 3))
    o.extend(srd(20, 6, WS_XCH, WS_XCH + 64 * 4 * 3 * 4 * 2560))
    e(f"s_mul_i32 s35, s{sW}, 2560"); e(f"s_mul_i32 s31, s{sTILE}, 122880"); e("s_add_u32 s35, s35, s31"); e("v_lshlrev_b32 v15, 3, v2")
    for j in range(1, 4):
        tb = 212 if j & 1 else 224
        e(f"s_add_u32 s31, s{sKQ}, {j}"); e("s_and_b32 s31, s31, 3"); e("s_mul_i32 s31, s31, 30720"); e("s_add_u32 s31, s31, s35"); e(f"s_add_u32 s31, s31, {(j-1)*10240}")
        for r in range(20): e(f"v_accvgpr_read_b32 v{236+r}, a{j*20+r}")
        for r in range(10): e(f"v_cvt_pk_bf16_f32 v{tb+r}, v{236+2*r}, v{237+2*r}")
        e(f"buffer_store_dwordx4 {vr(tb,4)}, v3, s[20:23], s31 offen{SC}"); e(f"buffer_store_dwordx4 {vr(tb+4,4)}, v3, s[20:23], s31 offen offset:1024{SC}")
        e(f"buffer_store_dwordx2 {vr(tb+8,2)}, v15, s[20:23], s31 offen offset:2048{SC}")
    o.extend(qstamp("t", 4))
    o.extend(srd(64, 60, None, SZ['out']))
    for j in range(1, 4):
        e(f"s_add_u32 s31, s{sW}, {j}"); e("s_and_b32 s31, s31, 3"); e("s_mul_i32 s31, s31, 15360"); e(f"s_add_u32 s31, s31, {(j-1)*5120}"); e(f"v_add_u32 v{20+j}, s31, v3")
    e(f"s_mul_i32 s31, s{sW}, 15360"); e("v_add_u32 v24, s31, v3")
    e("v_mul_u32_u24 v13, 2560, v4"); e("v_mul_u32_u24 v14, 40, v5"); e("v_add_u32 v13, v13, v14")
    e(f"s_lshl_b32 s31, s{sRB}, 3"); e(f"s_lshl_b32 s33, s{sRH}, 2"); e("s_add_u32 s31, s31, s33"); e(f"s_add_u32 s31, s31, s{sKQ}"); e("s_mul_i32 s31, s31, 40960")
    e(f"s_lshl_b32 s33, s{sCQ}, 1"); e(f"s_add_u32 s33, s33, s{sCH}"); e("s_mul_i32 s33, s33, 160"); e("s_add_u32 s31, s31, s33"); e("v_add_u32 v14, s31, v13")
    e(f"s_lshl_b32 s31, s{sH}, 2"); e(f"s_add_u32 s31, s31, s{sW}"); e("s_mul_i32 s31, s31, 40960"); e(f"s_mul_i32 s33, s{sI}, 160"); e("s_add_u32 s31, s31, s33")
    e("s_add_u32 s31, s31, 1280"); e("v_add_u32 v13, s31, v13")
    e(f"s_lshl_b32 s62, s{sTILE}, 7"); e(f"s_add_u32 s62, s62, {FL_X}"); e(f"s_lshl_b32 s63, s{sKQ}, 2"); e("s_add_u32 s63, s63, s62")
    for st in range(5):
        e(f"s_waitcnt vmcnt({9 + 9*(4-st)})")
        for nt in range(5):
            for j in range(4):
                acc = ar(80 + (j*5+nt)*4, 4)
                e(M16(acc, vr(RB+36*st+16+4*nt, 4), vr(RB+36*st+4*j, 4), acc))
    o.extend(qstamp("t", 5))
    for r in range(20): e(f"v_accvgpr_read_b32 v{52+r}, a{r}")
    for j in range(1, 4):
        for nt in range(5): e(f"ds_write_b128 v{20+j}, {ar(80+(j*5+nt)*4,4)} offset:{nt*1024}")
    for r in range(20): e(f"v_accvgpr_read_b32 v{32+r}, a{80+r}")
    o.extend(qstamp("t", 6))
    e("s_waitcnt vmcnt(0) lgkmcnt(0)"); e("s_barrier")
    o.extend(qstamp("t", 7))
    o.extend(wave0("L_p4w3", set_flag("s63")))
    for sl in range(3):
        for q in range(5): e(f"ds_read_b128 {vr(72+20*sl+4*q,4)}, v24 offset:{sl*5120+q*1024}")
    def out(src, acc, addr):
        L = [f"v_cvt_pk_bf16_f32 v{src+r}, v{acc+2*r}, v{acc+2*r+1}" for r in range(10)]
        L += [f"buffer_store_dwordx4 {vr(src,4)}, v{addr}, s[64:67], 0 offen", f"buffer_store_dwordx4 {vr(src+4,4)}, v{addr}, s[64:67], 0 offen offset:16",
              f"buffer_store_dwordx2 {vr(src+8,2)}, v{addr}, s[64:67], 0 offen offset:32"]
        return L
    e(f"s_mul_i32 s31, s{sKQ}, 30720"); e("s_add_u32 s35, s35, s31")
    e("s_waitcnt lgkmcnt(0)")
    for sl in range(3):
        for r in range(20): e(f"v_add_f32 v{32+r}, v{32+r}, v{72+20*sl+r}")
    o.extend(out(72, 32, 13))
    o.extend(qstamp("t", 8))
    o.extend(wave0("L_p4w4", wait_flags("L_p4s4", "s62", 15)))
    e("s_barrier")
    o.extend(qstamp("t", 9))
    for sl in range(3):
        tb = 140 + 10 * sl
        e(f"buffer_load_dwordx4 {vr(tb,4)}, v3, s[20:23], s35 offen{SC}"); e(f"buffer_load_dwordx4 {vr(tb+4,4)}, v3, s[20:23], s35 offen offset:1024{SC}")
        e(f"buffer_load_dwordx2 {vr(tb+8,2)}, v15, s[20:23], s35 offen offset:2048{SC}")
        if sl < 2: e("s_add_u32 s35, s35, 10240")
    for sl in range(3):
        e(f"s_waitcnt vmcnt({3*(2-sl)})")
        for r in range(10):
            x = 140 + 10*sl + r
            e(f"v_lshlrev_b32 v180, 16, v{x}"); e(f"v_and_b32 v181, 0xffff0000, v{x}")
            e(f"v_add_f32 v{52+2*r}, v{52+2*r}, v180"); e(f"v_add_f32 v{53+2*r}, v{53+2*r}, v181")
    o.extend(qstamp("t", 10))
    o.extend(out(184, 52, 14))
    o.extend(qstamp("t", 11))
    o.extend(stamp(12))
    if STAMP: o.extend(stamp_flush(2, 13, 6, f"s{sW}", "mega"))
    e("s_endpgm")
    post = fix_hazards(pre + top + loop, o)
    return pre, top + loop + bot, post

def phase3():
    P = {}
    def Kf(b, t, ds): return vr(KB + 32 * b + 4 * (4 * t + ds), 4)
    def Vf(b, dt): return ar(AV + 32 * b + 4 * dt, 4)
    def rdK(b, sp, f, addr, off): return f"ds_read_b128 {vr(KB+32*b+4*f,4)}, v{addr} offset:{off + sp*8192 + f*1024}"
    def rdV(b, sp, f, addr, off): return f"ds_read_b128 {ar(AV+32*b+4*f,4)}, v{addr} offset:{off + 16384 + sp*8192 + f*1024}"
    def stat(slot): return [(VL16, 0), (VL16, 32768), (VL16H, 0), (VL16H, 32768), (VL16HH, 0)][slot]
    def QK(p, b, cb, last):
        L = []
        for ds in range(4):
            for t in range(2):
                d = vr(SR + 8 * (p & 1) + 4 * t, 4)
                c = d if ds else (vr(CL + 8 * cb + 4 * t, 4) if last else vr(NM + 4 * cb, 4))
                L.append(M16(d, Kf(b, t, ds), vr(QR + 16 * cb + 4 * ds, 4), c))
        return L
    def PV(p, b, cb, init):
        pf = vr(PR + 4 * (p & 1), 4)
        L = [M16(ar(AO + (dt * 4 + cb) * 4, 4), Vf(b, dt), pf, "0" if init else ar(AO + (dt * 4 + cb) * 4, 4)) for dt in range(8)]
        L.append(M16(ar(AL + 4 * cb, 4), vr(ONES, 4), pf, "0" if init else ar(AL + 4 * cb, 4)))
        return L
    def block(p, units, extra, init=False):
        mf = []
        if p + 2 in units: mf += QK(p + 2, *units[p + 2])
        if p in units: mf += PV(p, *units[p][:2], init)
        ex = cv = []
        if p + 1 in units:
            s = SR + 8 * ((p + 1) & 1); d = PR + 4 * ((p + 1) & 1)
            ex = [f"v_exp_f32 v{s+k}, v{s+k}" for k in range(8)]
            cv = [f"v_cvt_pk_bf16_f32 v{d+k}, v{s+2*k}, v{s+2*k+1}" for k in range(4)]
        extra = list(extra); ei = ci = 0; seq = []
        ismem = lambda x: x.startswith("ds_") or x.startswith("buffer_")
        ncheap = max(1, len(mf) - len(ex))
        while ei < len(ex) or ci < len(cv) or extra:
            cur = []
            left = max(1, ncheap - sum(1 for z in seq if not z[0].startswith("v_exp")))
            many = sum(1 for x in extra if ismem(x)) > left
            while len(cur) < 2:
                if extra and (not ismem(extra[0]) or many or not any(ismem(x) for x in cur)): cur.append(extra.pop(0))
                elif ci < len(cv) and ei >= 2 * ci + 2: cur.append(cv[ci]); ci += 1
                else: break
            if cur: seq.append(cur)
            if ei < len(ex): seq.append([ex[ei]]); ei += 1
            elif not cur: break
        out = []
        for k, m in enumerate(mf):
            out.append(m)
            if k < len(seq): out += seq[k]
        return nopfix(out + [x for s in seq[len(mf):] for x in s])

    o = []; e = o.append
    e("L_p3:")
    e(f"s_load_dwordx2 s[60:61], s[0:1], {KA['A_wo']}"); e(f"s_load_dwordx2 s[62:63], s[0:1], {KA['B_wo']}")
    e(f"v_mov_b32 v{VDMA}, v1"); e(f"v_mov_b32 v{VL16}, v24"); e(f"v_add_u32 v{VL16H}, 0x10000, v24"); e(f"v_add_u32 v{VL16HH}, 0x20000, v24")
    e("v_and_b32 v3, 3, v2"); e("v_cmp_eq_u32 vcc, 0, v3"); e("v_mov_b32 v6, 0x3f803f80"); e("v_mov_b32 v7, 0")
    for r in range(4): e(f"v_cndmask_b32 v{ONES+r}, v7, v6, vcc")
    e("s_mov_b32 s39, 0")
    e("v_lshlrev_b32 v3, 2, v5"); e("v_and_b32 v29, 31, v2"); e("v_lshlrev_b32 v29, 2, v29")
    for r in range(4):
        e(f"v_add_u32 v6, {r}, v3"); e(f"v_cmp_gt_u32 {sr(48+2*r,2)}, v6, v4")
    o.extend(srd(12, 6, WS_CTX, WS_CTX + 128 * 148 * 1024))
    e("s_waitcnt lgkmcnt(0)")
    e(f"s_mov_b32 s56, {sum(SLABBASE[i] << (8*i) for i in range(4))}"); e(f"s_mov_b32 s57, {sum(SLABBASE[4+i] << (8*i) for i in range(4))}")
    e(f"s_lshl_b32 s31, s{sI}, 3"); e("s_lshr_b64 s[56:57], s[56:57], s31"); e("s_and_b32 s3, s56, 255"); e(f"s_add_u32 s3, s3, s{sH}")
    e("s_cmp_lt_u32 s3, 128"); e("s_cselect_b32 s60, s60, s62"); e("s_cselect_b32 s61, s61, s63"); e(f"s_mov_b32 s31, {SZ['B_wo']}"); e(f"s_cselect_b32 s66, {SZ['A_wo']}, s31")
    e("s_cselect_b32 s31, 0, 128"); e("s_mov_b32 s64, s60"); e("s_and_b32 s65, s61, 0xffff"); e("s_mov_b32 s67, 0x20000")
    e("s_sub_u32 s31, s3, s31"); e("s_min_u32 s31, s31, 200"); e("s_mul_i32 s44, s31, 40960"); e(f"s_mul_i32 s31, s{sW}, 10240"); e("s_add_u32 s44, s44, s31")
    e("L_att_start:")
    e("s_mov_b32 s47, -1")
    e(f"s_lshl_b32 s10, s{sI}, 17")
    e("s_mov_b32 s35, 0")
    e("s_waitcnt lgkmcnt(0)"); e("s_barrier")
    e(f"s_cmp_lt_u32 s{sW}, 2"); e("s_cbranch_scc0 L_attB")
    P["head"] = o
    def diag_units(cnt):
        return [(J, cb, J == cnt[cb] - 1) for J in range(8) for cb in (3, 2, 1, 0) if J < cnt[cb]]
    full = lambda f: ((f // 4) & 1, f % 4, False)
    for name, cnt, sh in (("A", [1, 4, 5, 8], 0), ("B", [2, 3, 6, 7], 1)):
        U = diag_units(cnt); assert len(U) == 18
        bf = lambda J: (J + sh) & 1
        o = []; e = o.append
        e(f"L_att{name}:")
        o.extend([rdK(bf(0), 0, f, *stat(1)) for f in range(8)] + [rdV(bf(0), 0, f, *stat(1)) for f in range(8)])
        e("s_cmp_lg_u32 s39, 0"); e(f"s_cbranch_scc1 L_have{name}")
        P["rd" + name] = o; o = []; e = o.append
        if name == "A":
            e(f"s_and_b32 s33, s{sW}, 1"); e(f"v_mov_b32 v6, {NEG}"); e("v_mov_b32 v7, 0"); e("s_cmp_eq_u32 s33, 0")
            for t in range(2):
                for r in range(4):
                    e(f"s_cselect_b64 s[56:57], {sr(48+2*r,2)}, 0" if t == 0 else f"s_cselect_b64 s[56:57], -1, {sr(48+2*r,2)}")
                    e(f"v_cndmask_b32 v{T+4*t+r}, v7, v6, s[56:57]")
        e("s_waitcnt lgkmcnt(8)")
        for cb in (3, 2, 1, 0):
            for ds in range(4):
                for t in range(2):
                    d = vr(CL + 8*cb + 4*t, 4)
                    c = d if ds else (vr(T+4*t, 4) if (cb == 0 and name == "A") else "0")
                    e(M16(d, Kf(bf(0), t, ds), vr(QR+16*cb+4*ds, 4), c))
        for cb in (3, 2, 1, 0):
            s = CL + 8*cb; m = NM + 4*cb
            e(f"v_max3_f32 v{m}, v{s}, v{s+1}, v{s+2}"); e(f"v_max3_f32 v{m+1}, v{s+3}, v{s+4}, v{s+5}")
            e(f"v_max3_f32 v{m}, v{m}, v{s+6}, v{s+7}"); e(f"v_max_f32 v{m}, v{m}, v{m+1}")
        xl = []
        for sw in ("v_permlane32_swap_b32", "v_permlane16_swap_b32"):
            xl += [f"v_mov_b32 v{NM+4*cb+1}, v{NM+4*cb}" for cb in range(4)]
            xl += [f"{sw} v{NM+4*cb}, v{NM+4*cb+1}" for cb in range(4)]
            xl += [f"v_max_f32 v{NM+4*cb}, v{NM+4*cb}, v{NM+4*cb+1}" for cb in range(4)]
        xl += [f"v_sub_f32 v{NM+4*cb+r}, 0, v{NM+4*cb}" for cb in range(4) for r in (1, 2, 3, 0)]
        P["xl"] = xl
        P["mx" + name] = fix_hazards(P["head"] + P["rd" + name], o + xl)
        o = []; e = o.append
        e(f"L_have{name}:")
        e(f"v_mov_b32 v6, {NEG}"); e(f"s_and_b32 s33, s{sW}, 1")
        for par in range(2):
            e(f"s_cmp_eq_u32 s33, {par}")
            for t in range(2):
                for r in range(4):
                    e(f"s_cselect_b64 s[56:57], {sr(48+2*r,2)}, 0" if t == 0 else f"s_cselect_b64 s[56:57], -1, {sr(48+2*r,2)}")
                    for cb in (par, par + 2): e(f"v_cndmask_b32 v{CL+8*cb+4*t+r}, v{NM+4*cb}, v6, s[56:57]")
        e("s_waitcnt lgkmcnt(8)")
        o.extend(stamp(5))
        units = {d: (bf(U[d][0]), U[d][1], U[d][2]) for d in range(18)}
        units.update({18 + f: full(f) for f in range(0, 8)})
        first = {}; last = {}
        for d, (J, cb, _) in enumerate(U):
            first.setdefault(J, d); last[J] = d
        steps = sorted(first)
        nJ = len(steps)
        for k in range(2):
            first[nJ + k] = 18 + 4 * k; last[nJ + k] = 21 + 4 * k
        sched = {p: [] for p in range(-2, 21)}
        def place(grp, need, lo):
            a = max(lo, need - 3)
            bl = [a, a + 1] if a + 1 <= need - 1 else [a]
            assert bl[-1] <= need - 1, (name, need, lo)
            n = len(grp) // len(bl)
            for k, b in enumerate(bl): sched[b] += grp[k*n:(k+1)*n]
        for J in range(1, nJ + 2):
            if J < nJ: pub = -2; ad = stat(J // 2 + 1); b = bf(J); sp = J & 1
            else: pub = 15; ad = stat(0); b = (J - nJ) & 1; sp = b
            place([rdK(b, sp, f, *ad) for f in range(8)], first[J] - 2, max(pub, last[J-2] - 1 if J >= 2 else -2))
            place([rdV(b, sp, f, *ad) for f in range(8)], first[J], max(pub, last[J-2] + 1 if J >= 2 else -2))
        def spread(dm, blocks):
            n = -(-len(dm) // len(blocks))
            for k, b in enumerate(blocks): sched[b] += dm[k*n:(k+1)*n]
        spread(kv_stage_static(0), [8, 9, 10]); spread(kv_stage_static(1), [11, 12, 13, 14]); spread(kv_stage_static(2), [15, 16, 17])
        spread(kv_stage_static(3), [18, 19, 20])
        bars = {2: "vmcnt(0)", 8: "lgkmcnt(0)", 13: "lgkmcnt(0)", 15: "vmcnt(VM15) lgkmcnt(0)"}
        body = []
        for p in range(-2, 21):
            if QST == "d" and p in (-2, 0, 2, 8, 10, 13, 15): body += _stamp(1 + [-2, 0, 2, 8, 10, 13, 15].index(p))
            if name == "A" and p == 13: body += [f"s_cmp_lg_u32 s{sI}, 0", "s_cbranch_scc1 L_pp0"] + wave0("L_pp0", [f"s_mov_b32 s32, {FL_P0}", f"buffer_load_dword v28, v29, {DBG}, s32 offen{SC}"])
            if name == "A" and p == 5:
                body += [f"s_cmp_lg_u32 s{sW}, 0", "s_cbranch_scc1 L_nopoll", f"buffer_load_dword v27, v26, {DBG}, 0 offen offset:32{SC}", "L_nopoll:"]
            if name == "A" and p == 8:
                body += [f"s_cmp_lg_u32 s{sW}, 0", "s_cbranch_scc1 L_rdy0", "s_waitcnt vmcnt(0)", "v_cmp_eq_u32 vcc, s100, v27", f"s_lshl_b32 s47, -1, s{sI}",
                         "s_nop 0", "s_or_b32 s47, s47, vcc_lo", "s_bitcmp1_b32 s47, 0", "s_cbranch_scc0 L_slow0", "L_rdy0:"]
            if p in bars: body += [f"s_waitcnt {bars[p]}", "s_barrier"]
            if QST == "d" and p == 2: body += _stamp(8)
            if QST == "d" and p == 9: body += _stamp(9)
            if QST == "d" and p == 17: body += _stamp(10)
            if p == 2 and name == "A":
                body += wave0("L_noflag", [f"s_lshl_b32 s31, s{sI}, 2", f"s_lshl_b32 s33, s{sH}, 7", "s_add_u32 s31, s31, s33"] + set_flag("s31", 32))
            body += block(p, units, sched[p], init=(p < 4))
            if p == 17: body += [f"s_cmp_eq_u32 s{sI}, 0", "s_cbranch_scc1 L_epiA"]
        body += ["s_mov_b32 s38, 0", "s_mov_b32 s45, 131072", "s_mov_b32 s33, 32768", f"v_add_u32 v{VRD}, 0x8000, v{VL16}", f"s_lshl_b32 s37, s{sI}, 2", "s_sub_u32 s37, s37, 1"]
        body += [f"v_lshlrev_b32 v30, 3, v{VL16}", "buffer_load_dword v24, v30, s[64:67], s44 offen",
                 "v_min_u32 v30, 2176, v30", "v_add_u32 v30, 8064, v30", "buffer_load_dword v25, v30, s[64:67], s44 offen"]
        body += ["s_mov_b32 s31, 1", "s_bitcmp1_b32 s47, 1", "s_cbranch_scc0 L_slow1"]
        if name == "A": body.append("s_branch L_loop")
        pre = P["head"] + P["rd" + name] + P["mx" + name]
        i15 = body.index("s_waitcnt vmcnt(VM15) lgkmcnt(0)")
        nld = sum(1 for x in body[:i15] if x.startswith("buffer_load_dwordx4"))
        body[i15] = f"s_waitcnt vmcnt({nld - 8}) lgkmcnt(0)"
        P["d" + name] = fin(pre, o + body)
    def slow(lab, back, bit):
        return [f"{lab}:", f"s_mov_b32 s34, {SPIN}", f"{lab}l:", f"buffer_load_dword v27, v26, {DBG}, 0 offen offset:32{SC}", "s_waitcnt vmcnt(0)",
                "v_cmp_eq_u32 vcc, s100, v27", "s_sub_u32 s34, s34, 1", "s_cselect_b32 s47, -1, s47", "s_or_b32 s47, s47, vcc_lo", f"s_bitcmp1_b32 s47, {bit}",
                f"s_cbranch_scc0 {lab}l", f"s_branch {back}"]
    P["spin"] = slow("L_slow0", "L_rdy0", "0") + slow("L_slow1", "L_loop", "s31") + p0.tagspin("L_tagspin", "L_tagok")
    funits = {f: full(f) for f in range(0, 64)}
    top = [".p2align 6", "L_loop:", "s_waitcnt vmcnt(16) lgkmcnt(0)", "s_barrier"]
    nxt = ["s_mov_b32 s45, s38", "s_mov_b32 s38, s33", "s_add_u32 s33, s33, 32768", "s_cmp_eq_u32 s33, 163840", "s_cselect_b32 s33, 0, s33",
           f"v_add_u32 v{VRD}, s33, v{VL16}", "s_sub_u32 s37, s37, 1"]
    loop = []
    for k in range(8):
        p = 11 + k
        j, r = divmod(p + 1, 4)
        ex = [rdK((j+1)&1, (j+1)&1, 4*r+f, VRD, 0) for f in range(4)] if r < 2 else [rdV((j+1)&1, (j+1)&1, 4*(r-2)+f, VRD, 0) for f in range(4)]
        d = []
        if k % 4 == 0: d.append(f"s_add_u32 m0, s{sW8K}, s45" if k == 0 else "s_add_u32 m0, m0, 4096")
        d.append(kv_dma(k))
        if k == 3: d.append("s_add_u32 s35, s35, 4096")
        if k == 5: d += nxt[:2]
        if k == 6: d += nxt[2:5]
        if k == 7: d += ["s_add_u32 s35, s35, 28672", "s_lshr_b32 s31, s35, 17"] + nxt[5:]
        ex = ex[:2] + d[:1] + ex[2:] + d[1:] if " m0," in d[0] else ex + d
        loop += block(p, funits, ex)
    pathA = P["head"] + P["rdA"] + P["mxA"] + P["dA"]
    loop = fin(pathA + top, loop)
    bot = ["s_cmp_eq_u32 s37, 0", "s_cbranch_scc1 L_tail", "s_bitcmp1_b32 s47, s31", "s_cbranch_scc1 L_loop", "s_branch L_slow1", "L_tail:"]
    tu = {f: full(f) for f in range(8, 16)}
    p0poll = lambda lab: wave0(lab, [f"s_mov_b32 s32, {FL_P0}", f"buffer_load_dword v28, v29, {DBG}, s32 offen{SC}"])
    tail = p0poll("L_pp1")
    for p in range(11, 16): tail += block(p, tu, [])
    tail = fin(pathA + top + loop + bot, tail)
    P["loop"] = top + loop + bot; P["tail"] = tail
    o = []; e = o.append
    e("L_epiA:")
    o.extend(stamp(6))
    nbp = sum(NB[i] << (4*i) for i in range(8)); pres = PRE
    e(f"s_lshl_b32 s31, s{sI}, 2"); e(f"s_lshr_b32 s40, {nbp}, s31"); e("s_and_b32 s40, s40, 15")
    plo = sum(pres[i] << (8*i) for i in range(4)); phi = sum(pres[4+i] << (8*i) for i in range(4))
    e(f"s_mov_b32 s42, {plo}"); e(f"s_mov_b32 s43, {phi}"); e(f"s_lshl_b32 s31, s{sI}, 3"); e("s_lshr_b64 s[42:43], s[42:43], s31"); e("s_and_b32 s41, s42, 255")
    e("s_lshl_b32 s41, s41, 2"); e(f"s_mul_i32 s31, s{sW}, s40"); e("s_add_u32 s41, s41, s31")
    o.extend(srd(16, 6, WS_KVB, WS_KVB + 64*4096))
    e("s_waitcnt vmcnt(0) lgkmcnt(0)")
    o.extend(wave0("L_p0ok", ["v_cmp_ne_u32 vcc, s100, v28", f"s_mov_b32 s32, {FL_P0}", "s_cmp_eq_u64 vcc, 0", "s_cbranch_scc1 L_p0ok"] + wait_all("L_p0s", "s32")))
    e("s_barrier")
    bd = []
    for s in range(3):
        for k in range(8):
            if k % 4 == 0: bd += [f"s_add_u32 m0, s{sW8K}, {s*32768+(k//4)*4096}", f"s_mov_b32 s34, {s*32768+(k//4)*4096}"]
            bd.append(f"buffer_load_dwordx4 v{VDMA}, s[16:19], s34 offen offset:{1024*(k&3)}{SC} lds")
    e("s_cmp_eq_u32 s40, 0"); e("s_cbranch_scc1 L_nopref")
    P["epi1"] = o; o = []; e = o.append
    BQ = 192
    o.extend(srd(20, 6, WS_QB, WS_QB + SZ['B_x']))
    e("s_lshr_b32 s42, s41, 5"); e(f"s_lshl_b32 s31, s{sH}, 1"); e("s_add_u32 s42, s42, s31"); e("s_and_b32 s43, s41, 31")
    e("v_and_b32 v3, 31, v2"); e("v_lshlrev_b32 v3, 3, v3"); e("v_add_u32 v3, 1024, v3")
    e("s_lshl_b32 s31, s42, 5"); e("s_add_u32 s31, s31, s43"); e("s_mul_i32 s31, s31, 1280")
    for cb in range(NMAX):
        if cb == 3: e("s_add_u32 s31, s31, 3840")
        e(f"buffer_load_dwordx4 {vr(BQ+8*cb,4)}, v{VL16}, s[20:23], s31 offen offset:{1280*(cb%3)}{SC}")
        e(f"buffer_load_dwordx2 {vr(BQ+8*cb+4,2)}, v3, s[20:23], s31 offen offset:{1280*(cb%3)}{SC}")
    o.extend(bd[:12])
    e("s_cmp_ge_u32 s3, 148"); e("s_cbranch_scc1 L_nopref")
    e(f"s_mul_i32 s31, s{sW}, {8*PITCH}"); e(f"s_add_u32 s31, s31, {SLAB}")
    for part in range(2):
        if part: e("s_mov_b64 exec, 0xffff")
        for r in range(8):
            e(f"s_add_u32 m0, s31, {PITCH*r + 1024*part}"); e(f"s_add_u32 s33, s44, {1280*r + 1024*part}"); e(f"buffer_load_dwordx4 v{VL16}, s[64:67], s33 offen lds")
    e("s_mov_b64 exec, -1")
    P["pref"] = o; o = []; e = o.append
    e("L_nopref:")
    def vote_write(nreg, areg, guard):
        L = [f"s_mov_b32 s31, {f2u(2.0**100)}", "s_mov_b64 s[56:57], 0"]
        for cb in range(nreg):
            if guard: L += [f"s_cmp_le_u32 s40, {cb}", f"s_cbranch_scc1 {guard}"]
            L += [f"v_accvgpr_read_b32 v{T+cb}, a{areg(cb)}",
                  f"v_cmp_ngt_f32 vcc, s31, v{T+cb}", "s_nop 1", "s_or_b64 s[56:57], s[56:57], vcc",
                  f"v_cmp_nlt_f32 vcc, 0.5, v{T+cb}", "s_nop 1", "s_or_b64 s[56:57], s[56:57], vcc"]
        if guard: L.append(guard + ":")
        L += ["s_cmp_lg_u64 s[56:57], 0", "s_cselect_b32 s31, 1, 0", "v_mov_b32 v7, s31", f"s_lshl_b32 s31, s{sW}, 2", f"s_add_u32 s31, s31, {VOTE}",
              "v_mov_b32 v6, s31", "ds_write_b32 v6, v7"]
        return L
    def vote_read(target):
        return [f"v_mov_b32 v6, {VOTE}", "ds_read_b128 v[12:15], v6", "s_waitcnt lgkmcnt(0)", "v_or3_b32 v12, v12, v13, v14", "v_or_b32 v12, v12, v15", "s_nop 0",
                "v_readfirstlane_b32 s31, v12", "s_nop 0", "s_cmp_lg_u32 s39, 0", "s_cselect_b32 s31, 0, s31", "s_cmp_lg_u32 s31, 0", f"s_cbranch_scc1 {target}"]
    o.extend(vote_write(4, lambda cb: AL + 4*cb, None))
    for cb in range(4): e(f"v_rcp_f32 v{T+4+cb}, v{T+cb}")
    e(f"s_lshl_b32 s31, s{sI}, 4"); e(f"s_add_u32 s32, s31, s{sW}"); e(f"s_sub_u32 s33, s31, s{sW}"); e("s_add_u32 s33, s33, 7")
    e("s_mul_i32 s32, s32, 151552"); e("s_mul_i32 s33, s33, 151552"); e(f"s_lshl_b32 s31, s{sH}, 12"); e("s_add_u32 s32, s32, s31"); e("s_add_u32 s33, s33, s31")
    n = 0
    for cb in range(4):
        if cb == 2: e(f"s_add_u32 s32, s32, {8*151552}"); e(f"s_add_u32 s33, s33, {8*151552}")
        for ds in range(4):
            tb = 128 + 16 * (n % 4); n += 1
            for k in range(8): e(f"v_accvgpr_read_b32 v{tb+k}, a{AO+((2*ds+(k>>2))*4+cb)*4+(k&3)}")
            for k in range(8): e(f"v_mul_f32 v{tb+k}, v{tb+k}, v{T+4+cb}")
            for k in range(4): e(f"v_cvt_pk_bf16_f32 v{tb+8+k}, v{tb+2*k}, v{tb+2*k+1}")
            e(f"buffer_store_dwordx4 {vr(tb+8,4)}, v{VL16}, s[12:15], s{32+(cb&1)} offen offset:{1024*ds}{SC}")
    o.extend(stamp(7))
    e("s_cmp_eq_u32 s40, 0"); e("s_cbranch_scc1 L_nopref2")
    P["epi2"] = o
    P["pref2"] = ["s_waitcnt vmcnt(40)"] + bd[12:]
    o = []; e = o.append
    e("L_nopref2:")
    e("s_waitcnt vmcnt(32) lgkmcnt(0)"); e("s_barrier")
    o.extend(vote_read("L_fbA"))
    ctxflag = [f"s_lshl_b32 s31, s{sI}, 7", f"s_lshl_b32 s33, s{sH}, 2", "s_add_u32 s31, s31, s33", f"s_add_u32 s31, s31, {FL_CTX}"] + set_flag("s31")
    e("s_cmp_eq_u32 s40, 0"); e("s_cbranch_scc1 L_fin0")
    e("s_mov_b32 s39, 0")
    e(f"s_cmp_eq_u32 s{sW}, 0"); e("s_cselect_b32 s45, 1, 0")
    e("s_cmp_ge_u32 s3, 148"); e("s_cbranch_scc1 L_B_start")
    e("s_cmp_lt_u32 s3, 128"); e("s_cselect_b32 s31, 2, 3"); e(f"s_mov_b32 s33, {4*PITCH}"); e(f"s_cselect_b32 s33, {16*PITCH}, s33")
    e("v_bfe_u32 v6, v2, 2, 2"); e("v_lshlrev_b32 v3, s31, v5"); e("v_add_u32 v3, v3, v6"); e(f"v_mul_u32_u24 v3, {PITCH}, v3"); e("v_and_b32 v7, 3, v2"); e("v_mul_u32_u24 v7, 40, v7")
    e(f"s_mul_i32 s31, s{sW}, 320"); e(f"s_add_u32 s31, s31, {SLAB}"); e("v_add3_u32 v3, v3, v7, s31"); e("v_add_u32 v6, s33, v3"); e(f"v_add_u32 v7, 4096, v{VL16}")
    for f in range(10):
        for p in range(2): e(f"ds_read_b64_tr_b16 {vr(64+4*f+2*p,2)}, v{(3, 6)[p]} offset:{160*(f//5)+8*(f%5)}")
    o.extend(srd(64, 6, WS_WOF, WS_WOF + 8 * 757760))
    e(f"s_mul_i32 s31, s{sW}, 1515520"); e("s_mul_i32 s33, s3, 5120"); e("s_add_u32 s31, s31, s33")
    e("s_waitcnt lgkmcnt(0)")
    for f in range(10):
        if f == 5: e("s_add_u32 s31, s31, 757760")
        e(f"buffer_store_dwordx4 {vr(64+4*f,4)}, v{VL16}, s[64:67], s31 offen offset:{1024*(f%5)}{SC}" if f % 5 < 4 else
          f"buffer_store_dwordx4 {vr(64+4*f,4)}, v7, s[64:67], s31 offen{SC}")
    BK = 144; BV = 160; BS = 64; BP = 96; VCUR = 176; VNXT = 177
    e("L_B_start:")
    for f in range(2): e(f"ds_read_b128 {vr(BK+4*f,4)}, v{VL16} offset:{1024*f}")
    for r in range(16 * NMAX): e(f"v_accvgpr_write_b32 a{r}, 0")
    e("s_mov_b32 s34, 98304"); e("s_mov_b32 s38, 0"); e("s_mov_b32 s37, 8")
    e("s_waitcnt lgkmcnt(0)")
    e("s_cmp_lg_u32 s39, 0"); e("s_cbranch_scc1 L_B_have")
    P["bhead"] = o; o = []; e = o.append
    for cb in range(NMAX): e(f"v_mov_b32 v{BQ+8*cb+6}, 0"); e(f"v_mov_b32 v{BQ+8*cb+7}, 0")
    e("s_nop 0")
    for cb in range(NMAX):
        d = vr(BS + 16*cb, 16)
        e(M32(d, vr(BK, 4), vr(BQ+8*cb, 4), "0")); e(M32(d, vr(BK+4, 4), vr(BQ+8*cb+4, 4), d))
    for cb in range(NMAX):
        s = BS + 16*cb; m = T + cb
        e(f"v_max3_f32 v{m}, v{s}, v{s+1}, v{s+2}")
        for k in range(3, 15, 2): e(f"v_max3_f32 v{m}, v{m}, v{s+k}, v{s+k+1}")
        e(f"v_max_f32 v{m}, v{m}, v{s+15}")
    bxl = [f"v_mov_b32 v{T+8+cb}, v{T+cb}" for cb in range(NMAX)] + ["s_nop 0"]
    bxl += [f"v_permlane32_swap_b32 v{T+cb}, v{T+8+cb}" for cb in range(NMAX)]
    for cb in range(NMAX):
        m = T + cb; t = T + 8 + cb
        bxl += [f"v_max_f32 v{m}, v{m}, v{t}", f"v_sub_f32 v{m}, 0, v{m}", f"v_and_b32 v{t}, 0xffff0000, v{m}", f"v_sub_f32 v{m}, v{m}, v{t}",
                f"v_lshrrev_b32 v{t}, 16, v{t}", f"v_and_b32 v6, 0xffff0000, v{m}", f"v_or_b32 v{BQ+8*cb+6}, v{t}, v6", f"v_sub_f32 v{m}, v{m}, v6",
                f"v_lshrrev_b32 v{BQ+8*cb+7}, 16, v{m}"]
    P["bmax"] = fix_hazards(P["bhead"], o + bxl)
    o = []; e = o.append
    e("L_B_have:")
    ns = sorted(set(x for x in NB if x))
    for nn in ns[:-1]:
        e(f"s_cmp_eq_u32 s40, {nn}"); e(f"s_cbranch_scc1 L_B{nn}")
    e(f"s_branch L_B{ns[-1]}")
    P["bsel"] = o
    def bQK(p, n):
        j, cb = divmod(p, n); d = vr(BS + 16*(p & 1), 16)
        return [M32(d, vr(BK+8*(j&1), 4), vr(BQ+8*cb, 4), "0"), M32(d, vr(BK+8*(j&1)+4, 4), vr(BQ+8*cb+4, 4), d)]
    def bPV(p, n):
        j, cb = divmod(p, n); a = ar(16*cb, 16)
        return [M32(a, vr(BV+8*(j&1)+4*f, 4), vr(BP+8*(p&1)+4*f, 4), a) for f in range(2)]
    def brd(which, J):
        st, js = divmod(J, 8)
        base = (BK if which == 0 else BV) + 8*(J & 1)
        return [f"ds_read_b128 {vr(base+4*f,4)}, v{VCUR if st == 0 else VNXT} offset:{js*4096 + which*2048 + 1024*f}" for f in range(2)]
    def bblock(p, n, extra):
        qk = bQK(p + 2, n) if p + 2 >= 0 else []
        pv = bPV(p, n) if p >= 0 else []
        mf = [qk[0], pv[0], qk[1], pv[1]] if qk and pv else qk + pv
        ext = []
        if (p + 3) % n == 0 and p + 3 > 0: ext += brd(0, (p + 3) // n)
        if (p + 1) % n == 0 and p + 1 >= 0: ext += brd(1, (p + 1) // n)
        ext += extra
        if p + 1 >= 0:
            s = BS + 16*((p+1) & 1); d = BP + 8*((p+1) & 1)
            G4 = [[f"v_exp_f32 v{s+4*g+k}, v{s+4*g+k}" for k in range(4)] for g in range(4)]
            cv = [f"v_cvt_pk_bf16_f32 v{d+k}, v{s+2*k}, v{s+2*k+1}" for k in range(8)]
            ch = [[], [], [], []]; gi = 0
            nm = sum(1 for x in ext if not x.startswith("s_")); per = -(-nm // 4) if nm > 4 else 1; cnt = 0
            for x in ext:
                ch[min(gi, 3)].append(x)
                if not x.startswith("s_"):
                    cnt += 1
                    if cnt % per == 0: gi += 1
            gaps = [G4[0][:2] + ch[0] + G4[0][2:] + cv[0:1], G4[1][:2] + ch[1] + G4[1][2:] + cv[1:3], G4[2][:2] + ch[2] + G4[2][2:] + cv[3:5],
                    G4[3][:2] + ch[3] + G4[3][2:] + cv[5:8]]
        else: gaps = [ext, [], [], []]
        out = []
        for k in range(4):
            if k < len(mf): out.append(mf[k])
            out += gaps[k]
        return nopfix(out)
    bpre = P["bhead"] + P["bmax"] + P["bsel"]
    P["bcode"] = []; P["bpaths"] = []
    for nn in ns:
        lead = [f"L_B{nn}:", f"v_mov_b32 v{VCUR}, v{VL16}", f"v_add_u32 v{VNXT}, 0x8000, v{VL16}"]
        for p in range(-3, 0): lead += bblock(p, nn, [])
        lead = fin(bpre, lead)
        lead += ["s_waitcnt vmcnt(0)" if False else "s_cmp_lt_u32 s3, 148", f"s_cbranch_scc1 L_bw{nn}", "s_waitcnt vmcnt(8)", f"L_bw{nn}:", "s_waitcnt vmcnt(18)", "s_barrier",
                 f"s_add_u32 s33, s{sW8K}, 98304"]
        btop = [".p2align 6", f"L_Bloop{nn}:"]
        body = []
        for p in range(8 * nn):
            ex = []
            if p % nn == 0:
                k = p // nn
                if k == 0: ex.append("s_mov_b32 m0, s33")
                if k == 4: ex.append("s_add_u32 m0, s33, 4096")
                ex.append(f"buffer_load_dwordx4 v{VDMA}, s[16:19], s34 offen offset:{1024*(k&3)}{SC} lds")
                if k == 3: ex.append("s_add_u32 s34, s34, 4096")
                if k == 7: ex.append("s_add_u32 s34, s34, 28672")
            body += bblock(p, nn, ex)
        body += ["s_add_u32 s31, s38, 65536", "s_and_b32 s31, s31, 0x1ffff", f"s_add_u32 s33, s38, s{sW8K}", "s_add_u32 s38, s38, 32768", "s_and_b32 s38, s38, 0x1ffff",
                 f"v_mov_b32 v{VCUR}, v{VNXT}", f"v_add_u32 v{VNXT}, s31, v{VL16}", "s_sub_u32 s37, s37, 1", "s_waitcnt vmcnt(8) lgkmcnt(0)", "s_barrier"]
        body = fin(bpre + lead + btop, body)
        bbot = ["s_cmp_lg_u32 s45, 0", f"s_cbranch_scc1 L_pub{nn}", f"L_pubd{nn}:", "s_cmp_lg_u32 s37, 0", f"s_cbranch_scc1 L_Bloop{nn}", "s_branch L_epiB"]
        pub = [f"L_pub{nn}:", "s_mov_b32 s45, 0", "s_mov_b32 s46, s33"] + ctxflag + ["s_min_u32 s31, s3, 255", "s_lshl_b32 s31, s31, 2", f"s_add_u32 s31, s31, {FL_P0 + 1024}"] + set_flag("s31") + ["s_mov_b32 s33, s46", f"s_branch L_pubd{nn}"]
        P["bcode"] += lead + btop + body + bbot + pub
        P["bpaths"].append(lead + btop + body + bbot + btop + body + bbot)
    o = []; e = o.append
    e("L_epiB:")
    o.extend(stamp(8))
    o.extend(p4_setup("b"))
    o.extend(vote_write(NMAX, lambda cb: 16*cb + 10, "L_B_chk"))
    e("v_and_b32 v3, 31, v2"); e("v_lshlrev_b32 v3, 4, v3"); e(f"v_add_u32 v3, {STG}, v3")
    e("v_lshrrev_b32 v12, 5, v2"); e("v_mul_u32_u24 v12, 5, v12"); e(f"s_mul_i32 s31, s{sW}, s40"); e("s_mul_i32 s31, s31, 10"); e("v_add_u32 v12, s31, v12")
    for cb in range(NMAX):
        e(f"s_cmp_le_u32 s40, {cb}"); e("s_cbranch_scc1 L_join")
        tb = 64 + 32 * (cb & 1)
        e(f"v_rcp_f32 v13, v{T+cb}")
        for k in range(10): e(f"v_accvgpr_read_b32 v{tb+k}, a{16*cb+k}")
        for k in range(10): e(f"v_mul_f32 v{tb+k}, v{tb+k}, v13")
        for k in range(5):
            e(f"v_cvt_pk_bf16_f32 v{tb+10+k}, v{tb+2*k}, v{tb+2*k+1}")
            e(f"v_add_u32 v14, {10*cb+k}, v12"); e("v_lshrrev_b32 v15, 2, v14"); e("v_and_b32 v14, 3, v14")
            e("v_lshl_add_u32 v15, v15, 9, v3"); e(f"v_lshl_add_u32 v{tb+16+k}, v14, 2, v15")
            e(f"ds_write_b32 v{tb+16+k}, v{tb+10+k}")
    e("L_join:")
    pm, ps = p4_check()
    o.extend(pm)
    e("s_waitcnt lgkmcnt(0)"); e("s_barrier")
    e("s_cmp_eq_u32 s40, 0"); e("s_cbranch_scc1 L_p4")
    o.extend(vote_read("L_fbB"))
    o.extend(stamp(9))
    P["fin0"] = ["L_fin0:", "s_waitcnt vmcnt(0)", "s_barrier"] + wave0("L_cf0", ctxflag) + stamp(8) + stamp(9) + p4_setup("0") + ["s_branch L_join"] + ps
    P["epiB"] = o
    o = []; e = o.append
    e("L_fbA:")
    e("s_mov_b32 s39, 1"); e(f"s_lshl_b32 s10, s{sI}, 17"); e("s_add_u32 s10, s10, 131072")
    for cb in range(4): e(f"v_mov_b32 v{NM+4*cb}, {NEG}")
    e(f"s_lshl_b32 s31, s{sI}, 8"); e("v_lshlrev_b32 v3, 2, v5"); e("v_sub_u32 v3, v4, v3"); e("v_add_u32 v3, s31, v3")
    e(f"s_lshl_b32 s31, s{sW}, 4"); e("v_add_u32 v8, s31, v3"); e("v_add_u32 v10, 128, v8"); e("s_sub_u32 s31, 112, s31"); e("v_add_u32 v9, s31, v3"); e("v_add_u32 v11, 128, v9")
    e(f"s_lshl_b32 s37, s{sI}, 3"); e("s_add_u32 s37, s37, 8"); e("s_mov_b32 s33, 0"); e(f"v_mov_b32 v6, {NEG}")
    e("s_waitcnt vmcnt(0)")
    e("L_fbA_loop:")
    e("s_lshr_b32 s34, s33, 1"); e("s_lshl_b32 s34, s34, 15"); e("s_and_b32 s31, s33, 1"); e("s_lshl_b32 s31, s31, 13"); e("s_add_u32 s34, s34, s31")
    for f in range(8):
        if f == 4: e("s_add_u32 s34, s34, 4096")
        e(f"buffer_load_dwordx4 {vr(KB+4*f,4)}, v{VL16}, {KV}, s34 offen offset:{1024*(f&3)}{SC}")
    e("s_waitcnt vmcnt(0)")
    for cb in range(4):
        for ds in range(4):
            for t in range(2):
                d = vr(CL + 8*cb + 4*t, 4)
                e(M16(d, Kf(0, t, ds), vr(QR+16*cb+4*ds, 4), d if ds else "0"))
    e("s_nop 7"); e("s_lshl_b32 s31, s33, 5")
    for cb in range(4):
        for k in range(8):
            e(f"s_add_u32 s34, s31, {16*(k>>2)+(k&3)}"); e(f"v_cmp_gt_i32 vcc, s34, v{8+cb}"); e("s_nop 1")
            e(f"v_cndmask_b32 v7, v{CL+8*cb+k}, v6, vcc"); e(f"v_max_f32 v{NM+4*cb}, v{NM+4*cb}, v7")
    e("s_add_u32 s33, s33, 1"); e("s_cmp_lt_u32 s33, s37"); e("s_cbranch_scc1 L_fbA_loop")
    o.extend(fix_hazards(o, P["xl"]))
    e("s_barrier")
    e(f"s_lshl_b32 s35, s{sI}, 17")
    for s in range(4): o.extend(nopfix(kv_stage_static(s + 1)))
    e("s_waitcnt vmcnt(0)")
    e("s_branch L_att_start")
    P["fbA"] = o; o = []; e = o.append
    e("L_fbB:")
    e("s_mov_b32 s39, 1")
    for cb in range(NMAX): e(f"v_mov_b32 v{T+cb}, {NEG}"); e(f"v_mov_b32 v{BQ+8*cb+6}, 0"); e(f"v_mov_b32 v{BQ+8*cb+7}, 0")
    e("s_mov_b32 s34, 0")
    e("L_fbB_loop:")
    for f in range(2): e(f"buffer_load_dwordx4 {vr(BK+4*f,4)}, v{VL16}, s[16:19], s34 offen offset:{1024*f}{SC}")
    e("s_waitcnt vmcnt(0)")
    for cb in range(NMAX):
        d = vr(BS + 16*cb, 16)
        e(M32(d, vr(BK, 4), vr(BQ+8*cb, 4), "0")); e(M32(d, vr(BK+4, 4), vr(BQ+8*cb+4, 4), d))
    e("s_nop 11")
    for cb in range(NMAX):
        for k in range(0, 16, 2): e(f"v_max3_f32 v{T+cb}, v{T+cb}, v{BS+16*cb+k}, v{BS+16*cb+k+1}")
    e("s_add_u32 s34, s34, 4096"); e("s_cmp_lt_u32 s34, 262144"); e("s_cbranch_scc1 L_fbB_loop")
    o.extend(fix_hazards(o, bxl))
    e("s_barrier")
    o.extend(bd)
    e("s_waitcnt vmcnt(0)"); e("s_barrier")
    e("s_branch L_B_start")
    P["fbB"] = o
    return P

def gen_mega():
    p1, lp, q = phase12()
    P = phase3()
    code = p1 + lp + q
    code += P["head"] + P["rdA"] + P["mxA"] + P["dA"] + P["rdB"] + P["mxB"] + P["dB"] + P["loop"] + P["tail"]
    code += P["epi1"] + P["pref"] + P["epi2"] + P["pref2"] + P["bhead"] + P["bmax"] + P["bsel"] + P["bcode"] + P["epiB"]
    p4a, p4l, p4b = phase4()
    code += p4a + p4l + p4b + P["fin0"]
    check(P["epiB"] + p4a + p4l + p4l + p4b, "mega p4")
    f0 = P["fin0"]; check(f0[:f0.index("s_branch L_join")] + P["epiB"][P["epiB"].index("L_join:"):] + p4a + p4l[:p4l.index("s_cbranch_scc1 L_p4x", len(p4l) // 2)] + p4b, "mega p4 n0")
    jm, jh, jk, jv, jsp = p0.jobG()
    f6 = ["L_first6:", "s_waitcnt vmcnt(0)", "s_barrier"] + wave0("L_f6w", [f"s_lshl_b32 s31, s{sH}, 2", f"s_add_u32 s31, s31, {FL_P0}"] + set_flag("s31")) + ["s_branch L_first"]
    code += P["spin"] + P["fbA"] + P["fbB"] + jm + jh + jk + jv + jsp + f6 + ["L_end:", "s_endpgm"]
    i0 = p1.index("s_cbranch_scc1 L_jobG") + 1; i1 = p1.index("L_jobG_ret:"); i2 = p1.index("s_cbranch_scc1 L_first6") + 1; i3 = p1.index("L_first:")
    check(p1[:i0] + jm + p1[i0:i1] + jh + jk + jv[jv.index("L_gdone:"):] + p1[i1:i2] + f6 + p1[i3:] + lp, "job G k")
    check(p1[:i0] + jm + p1[i0:i1] + jh + jv + p1[i1:i2] + f6 + p1[i3:] + lp, "job G v")
    epi = P["epi1"] + P["pref"] + P["epi2"] + P["pref2"] + P["bhead"] + P["bmax"] + P["bsel"]
    for n in "AB":
        check(p1 + lp + lp + q + P["head"] + P["rd"+n] + P["mx"+n] + P["d"+n] + P["loop"] + P["loop"] + P["tail"] + epi
              + P["bpaths"][0] + P["epiB"], f"mega {n}")
    for n in "AB":
        D = P["d"+n]; cut = D.index("s_cbranch_scc1 L_epiA") + 1
        check(P["head"] + P["rd"+n] + P["mx"+n] + D[:cut] + P["epi1"] + P["epi2"] + P["bhead"], f"mega i0 {n}")
        ia = P["head"].index("L_att_start:")
        check(epi[:epi.index("s_cbranch_scc1 L_fbA")+1] + P["fbA"] + P["head"][ia:] + P["rd"+n] + P["d"+n], f"mega fbA {n}")
    for bp in P["bpaths"][1:]: check(epi + bp + P["epiB"], "mega B")
    ib = P["bhead"].index("L_B_start:")
    check(P["epiB"][:P["epiB"].index("s_cbranch_scc1 L_fbB")+1] + P["fbB"] + P["bhead"][ib:] + P["bsel"] + P["bpaths"][0], "mega fbB")
    if os.environ.get("DUMP"):
        open("m_q.txt", "w").write("\n".join(q)); open("m_dA.txt", "w").write("\n".join(P["dA"]))
        open("m_loop.txt", "w").write("\n".join(P["loop"]))
    return code
```

```python
from asmlib import *
from common import *
import os
GST = os.environ.get('QST', '') == 'g'
SC = " sc1"
sH, sI, sW, sW8K = 28, 29, 30, 36
CB = LOG2E / (20 ** 0.5)
JG = int(os.environ.get('JG', '4'))
def nopfix(L):
    r = []
    for i, x in enumerate(L):
        r.append(x)
        if " m0," in x and i + 1 < len(L) and " lds" in L[i + 1]: r.append("s_nop 0")
    return r

def w80_voffsets(e, dst, sbase):
    for j in range(5):
        e(f"v_add_u32 v6, {64*j}, v2"); e("v_mul_u32_u24 v7, 6554, v6"); e("v_lshrrev_b32 v7, 16, v7")
        e("v_mul_u32_u24 v3, 10, v7"); e("v_sub_u32 v6, v6, v3"); e("v_lshlrev_b32 v6, 4, v6")
        e("v_bfe_u32 v3, v7, 2, 2"); e("v_lshlrev_b32 v3, 3, v3"); e("v_lshrrev_b32 v1, 4, v7"); e("v_lshlrev_b32 v1, 2, v1")
        e("v_and_b32 v7, 3, v7"); e("v_add3_u32 v7, v7, v3, v1"); e("v_mul_u32_u24 v7, 1280, v7")
        e(f"v_add3_u32 v{dst+j}, v7, v6, {sbase}")

def tagspin(lab, back):
    return [f"{lab}:", f"s_mov_b32 s34, {1 << 18}", "v_mov_b32 v7, 0", f"{lab}l:", f"global_load_dword v6, v7, s[4:5]{SC}", "s_waitcnt vmcnt(0)",
            "v_readfirstlane_b32 s100, v6", "s_sub_u32 s34, s34, 1", "s_cselect_b32 s100, 8, s100", "s_cmp_eq_u32 s100, 0", f"s_cbranch_scc1 {lab}l", f"s_branch {back}"]

def jobG():
    o = []; e = o.append
    e("L_jobG:")
    e(f"s_load_dwordx4 s[12:15], s[0:1], {KA['B_x']}")
    e(f"s_load_dwordx4 s[48:51], s[0:1], {KA['B_wk']}")
    e("v_lshrrev_b32 v3, 3, v2"); e("v_and_b32 v6, 7, v2"); e("v_lshrrev_b32 v5, 4, v2"); e("v_and_b32 v4, 15, v2")
    e(f"s_mul_i32 s31, s{sW}, 81920")
    e("v_mul_u32_u24 v3, 1280, v3"); e("v_add_u32 v3, s31, v3"); e("v_xor_b32 v6, v6, v5"); e("v_lshlrev_b32 v6, 4, v6")
    e("v_add_u32 v8, v3, v6"); e("v_xor_b32 v6, 64, v6"); e("v_add_u32 v9, v3, v6"); e("v_add_u32 v9, 9216, v9")
    e(f"s_and_b32 s40, s{sH}, 3"); e(f"s_lshr_b32 s41, s{sH}, 2")
    e(f"s_lshr_b32 s31, s{sW}, 1"); e("s_mul_i32 s31, s31, 160"); e("s_mul_i32 s32, s40, 320"); e("s_add_u32 s31, s31, s32")
    e(f"s_and_b32 s32, s{sW}, 1"); e("s_mul_i32 s32, s32, 40960"); e("s_add_u32 s31, s31, s32")
    w80_voffsets(e, 10, "s31")
    e(f"s_lshl_b32 s{sW8K}, s{sW}, 13"); e(f"s_mul_i32 s39, s{sW}, 5120")
    e("s_waitcnt lgkmcnt(0)")
    e("s_mul_i32 s31, s41, 327680")
    o.extend(srd(16, 12, "s31", SZ['B_x'])); o.extend(srd(20, 14, None, SZ['B_wq']))
    XS = [0, 32768, 65536]
    def dma(s):
        k = s % 3; L = []
        for half in range(2):
            L.append(f"s_add_u32 m0, s{sW8K}, {XS[k] + 4096*half}")
            for j in range(4):
                if j % 2 == 0: L.append(f"s_mov_b32 s32, {s*128 + 40960*half + 9216*j}")
                L.append(f"buffer_load_dwordx4 v{8+(j&1)}, s[16:19], s32 offen offset:{1024*j} lds")
        L.append(f"s_mov_b32 s34, {s*81920}")
        for j in range(5):
            L += [f"s_add_u32 m0, s39, {98304 + 20480*k + 1024*j}", f"buffer_load_dwordx4 v{10+j}, s[20:23], s34 offen lds"]
        return L
    o.extend(nopfix(dma(0)))
    e("s_cmp_lt_u32 s40, 2"); e("s_cselect_b32 s48, s48, s50"); e("s_cselect_b32 s49, s49, s51")
    o.extend(srd(52, 48, None, SZ['B_wk']))
    e("v_lshlrev_b32 v23, 4, v2"); e(f"s_mul_i32 s31, s{sW}, 7168"); e("s_add_u32 s33, s31, 65536")
    for j in range(7):
        if j % 4 == 0: e(f"s_add_u32 m0, s33, {1024*j}"); e(f"s_add_u32 s32, s31, {1024*j}")
        e(f"buffer_load_dwordx4 v23, s[52:55], s32 offen offset:{1024*(j&3)} lds")
    o.extend(nopfix(dma(1)))
    e("v_mul_u32_u24 v7, 6554, v2"); e("v_lshrrev_b32 v7, 16, v7"); e("v_mul_u32_u24 v3, 10, v7"); e("v_sub_u32 v3, v2, v3")
    e("v_mul_u32_u24 v7, 1280, v7"); e("v_lshlrev_b32 v3, 7, v3"); e("v_add_u32 v3, v3, v7")
    e("s_lshl_b32 s31, s40, 2"); e(f"s_add_u32 s31, s31, s{sW}"); e("s_mul_i32 s31, s31, 20480")
    for k in range(3):
        e(f"buffer_load_dword v{24+k}, v3, s[16:19], s31 offen"); e("s_add_u32 s31, s31, 7680")
    e(f"s_lshl_b32 s31, s{sH}, 2"); e(f"s_add_u32 s31, s31, s{sW}"); e("s_mul_i32 s31, s31, 6400")
    e("buffer_load_dword v27, v3, s[20:23], s31 offen")
    e("v_lshrrev_b32 v6, 1, v4"); e("v_xor_b32 v6, v5, v6"); e("v_lshlrev_b32 v6, 4, v6"); e("v_lshlrev_b32 v3, 7, v4"); e("v_add_u32 v3, v3, v6")
    e(f"v_add_u32 v16, s{sW8K}, v3"); e("v_xor_b32 v17, 64, v16"); e("v_add_u32 v18, 0x10000, v16"); e("v_add_u32 v19, 0x10000, v17")
    e("v_bfe_u32 v6, v2, 2, 2"); e("v_and_b32 v7, 3, v2"); e("v_lshlrev_b32 v3, 2, v5"); e("v_add_u32 v3, v3, v6"); e("v_mul_u32_u24 v3, 160, v3")
    e("v_mul_u32_u24 v7, 40, v7"); e("v_add_u32 v20, v3, v7"); e("v_add_u32 v20, 98304, v20")
    FB = 64
    def reads(t):
        s, ks = divmod(t, 2); k = s % 3; b = FB + 56 * (t & 1)
        X = [f"ds_read_b128 {vr(b+4*cb,4)}, v{16+ks+(2 if k == 2 else 0)} offset:{(XS[k] & 65535) + 2048*cb}" for cb in range(4)]
        W = [f"ds_read_b64_tr_b16 {vr(b+16+4*f+2*p,2)}, v20 offset:{20480*k+10240*(f//5)+5120*ks+2560*p+8*(f%5)}" for f in range(10) for p in range(2)]
        return W[:2] + X + W[2:]
    e("v_bfe_u32 v6, v2, 2, 2"); e("v_lshlrev_b32 v3, 3, v5"); e("v_add_u32 v3, v3, v6"); e("v_mul_u32_u24 v3, 40, v3"); e("v_and_b32 v7, 3, v2"); e("v_lshlrev_b32 v7, 3, v7")
    e("s_and_b32 s31, s40, 1"); e("s_lshl_b32 s31, s31, 5"); e("s_add_u32 s31, s31, 65536"); e("v_add3_u32 v3, v3, v7, s31")
    e("s_waitcnt vmcnt(17)"); e("s_barrier")
    for t in range(20):
        for p in range(2): e(f"ds_read_b64_tr_b16 {vr(176+4*t+2*p,2)}, v3 offset:{1280*t+160*p}")
    e("s_waitcnt lgkmcnt(0)"); e("s_barrier")
    o.extend(nopfix(dma(2)))
    o.extend(reads(0))
    carry = []
    for t in range(20):
        s, ks = divmod(t, 2); b = FB + 56 * (t & 1)
        m = [M16(ar(((cb*2+f//5)*5+f%5)*4,4), vr(b+16+4*f,4), vr(b+4*cb,4), "0" if t == 0 else ar(((cb*2+f//5)*5+f%5)*4,4)) for f in range(10) for cb in range(4)]
        for cb in range(4):
            m.append(M16(ar(160+4*cb,4), vr(176+4*t,4), vr(b+4*cb,4), "0" if t == 0 else ar(160+4*cb,4)))
            m.append(M16(ar(176+4*cb,4), vr(b+4*cb,4), vr(176+4*t,4), "0" if t == 0 else ar(176+4*cb,4)))
        dm = []
        if GST and ks == 0: o.extend(stamp(1 + s))
        if ks == 1:
            o.extend(m[:4]); m = m[4:]
            e(f"s_waitcnt vmcnt({17 if s == 0 else 13 if s < 8 else 0}) lgkmcnt(0)"); e("s_barrier")
            if s <= 6:
                dm = dma(s + 3); cut = [i for i, x in enumerate(dm) if x.startswith("buffer")][7]
                while dm[cut - 1].startswith("s_"): cut -= 1
                carry = dm[cut:]; dm = dm[:cut]
            if s == 1:
                o.extend(srd(24, 4, None, 256)); e("v_mov_b32 v61, 0"); e(f"buffer_load_dword v60, v61, s[24:27], 0 offen{SC}")
            if s == 3:
                o += ["v_readfirstlane_b32 s100, v60", "s_nop 0", "s_cmp_eq_u32 s100, 0", "s_cbranch_scc1 L_gspin", "L_gok:"]
        else:
            dm = carry; carry = []
        rd = [(1.6 * k, x) for k, x in enumerate(reads(t + 1))] if t < 19 else []
        pos = 0.5; dl = []
        for x in dm:
            dl.append((pos, x)); pos += 0.4 if x.startswith("s_") else 5
        o.extend(nopfix(interleave2(m, [rd, dl], 8, std_cost)))
    if GST: o.extend(stamp(11))
    e("s_barrier")
    e("s_branch L_main")
    body = fin([], o); o = []; e = o.append
    e("L_jobG_out:")
    e(f"s_and_b32 s48, s{sH}, 3"); e(f"s_lshr_b32 s49, s{sH}, 2")
    e("v_mul_u32_u24 v236, 1280, v5"); e("v_lshlrev_b32 v237, 4, v4"); e("v_add_u32 v238, v236, v237"); e("v_lshlrev_b32 v237, 3, v4"); e("v_add_u32 v239, v236, v237")
    o.extend(srd(52, 6, WS_QB, WS_QB + SZ['B_x']))
    e(f"s_mov_b32 s50, {f2u(CB)}")
    e(f"s_lshl_b32 s31, s49, 3"); e(f"s_lshl_b32 s51, s{sW}, 1"); e("s_add_u32 s31, s31, s51"); e("s_lshl_b32 s31, s31, 5"); e("s_lshl_b32 s51, s48, 3")
    e("s_add_u32 s31, s31, s51"); e("s_mul_i32 s31, s31, 1280")
    n = 0
    for cb in range(4):
        for half in range(2):
            tb = 64 + 32 * (n % 3); n += 1
            for r in range(20): e(f"v_accvgpr_read_b32 v{tb+r}, a{(cb*2+half)*20+r}")
            for r in range(20): e(f"v_mul_f32 v{tb+r}, s50, v{tb+r}")
            for r in range(10): e(f"v_cvt_pk_bf16_f32 v{tb+20+r}, v{tb+2*r}, v{tb+2*r+1}")
            e(f"s_add_u32 s51, s31, {(cb >> 1)*40960 + half*5120}")
            e(f"buffer_store_dwordx4 {vr(tb+20,4)}, v238, s[52:55], s51 offen offset:{(cb&1)*256}{SC}")
            e(f"buffer_store_dwordx4 {vr(tb+24,4)}, v238, s[52:55], s51 offen offset:{(cb&1)*256+512}{SC}")
            e(f"buffer_store_dwordx2 {vr(tb+28,2)}, v239, s[52:55], s51 offen offset:{(cb&1)*128+1024}{SC}")
    o.extend(srd(52, 6, WS_KVB, WS_KVB + 64 * 4096))
    e("s_lshl_b32 s50, s49, 3"); e(f"s_lshl_b32 s51, s{sW}, 1"); e("s_add_u32 s50, s50, s51"); e("s_lshl_b32 s50, s50, 12"); e("s_add_u32 s51, s50, 4096")
    e("v_mov_b32 v176, 0"); e("v_and_b32 v171, 1, v5"); e("v_lshrrev_b32 v172, 1, v5")
    e("s_cmp_lt_u32 s48, 2"); e("s_cbranch_scc0 L_gV")
    hd = o; o = []; e = o.append
    def cv(base):
        L = [f"v_accvgpr_read_b32 v{64+r}, a{base+r}" for r in range(16)]
        return L + [f"v_cvt_pk_bf16_f32 v{240+r}, v{64+2*r}, v{65+2*r}" for r in range(8)]
    o += cv(160)
    o += ["v_lshlrev_b32 v170, 9, v172", "v_lshlrev_b32 v173, 3, v171", "v_lshlrev_b32 v174, 4, v4", "v_add3_u32 v170, v170, v173, v174",
          "s_cmp_eq_u32 s48, 0", "s_cbranch_scc1 L_gK0",
          "v_add_u32 v170, 1024, v170", "v_cmp_eq_u32 vcc, 1, v5", "v_mov_b32 v174, 0x3f803f80", "v_mov_b32 v175, 0x00003f80", "s_nop 0",
          "v_cndmask_b32 v174, v176, v174, vcc", "v_cndmask_b32 v175, v176, v175, vcc", "v_cmp_eq_u32 vcc, 0, v5", "s_nop 1"]
    for cb in range(4): o += [f"v_cndmask_b32 v{240+2*cb}, v174, v{240+2*cb}, vcc", f"v_cndmask_b32 v{241+2*cb}, v175, v{241+2*cb}, vcc"]
    o.append("L_gK0:")
    for cb in range(4): e(f"buffer_store_dwordx2 {vr(240+2*cb,2)}, v170, s[52:55], s{50+(cb>>1)} offen offset:{256*(cb&1)}{SC}")
    e("s_branch L_gdone")
    pk = o; o = []; e = o.append
    e("L_gV:")
    o += cv(176)
    o += ["v_lshlrev_b32 v171, 9, v171", "v_lshlrev_b32 v172, 3, v172", "v_add_u32 v171, v171, v172", "v_add_u32 v171, 2048, v171",
          "v_cmp_le_u32 vcc, 10, v4", "v_mov_b32 v188, 1", "s_nop 0", "v_cndmask_b32 v188, v176, v188, vcc", "v_mul_u32_u24 v189, 10, v188", "v_sub_u32 v189, v4, v189",
          "s_cmp_eq_u32 s48, 2", "s_cbranch_scc1 L_gV0",
          "v_subrev_u32 v168, 4, v4", "v_and_b32 v188, 1, v168", "v_lshrrev_b32 v189, 1, v168", "v_add_u32 v189, 10, v189",
          "v_cmp_eq_u32 vcc, 10, v189", "v_mov_b32 v174, 0x3f803f80", "s_nop 0", "v_cndmask_b32 v174, v176, v174, vcc",
          "v_cmp_gt_u32 vcc, 4, v4", "v_add_u32 v169, 6, v4", "v_mov_b32 v168, 1",
          "v_cndmask_b32 v188, v188, v168, vcc", "v_cndmask_b32 v189, v189, v169, vcc"]
    for r in range(8): e(f"v_cndmask_b32 v{240+r}, v174, v{240+r}, vcc")
    o += ["L_gV0:", "v_lshrrev_b32 v177, 2, v189", "v_lshlrev_b32 v177, 3, v177", "v_and_b32 v178, 3, v189", "v_lshlrev_b32 v179, 2, v188",
          "v_add3_u32 v177, v177, v178, v179", "v_lshlrev_b32 v177, 4, v177", "v_add_u32 v170, v177, v171"]
    for cb in range(4): e(f"buffer_store_dwordx2 {vr(240+2*cb,2)}, v170, s[52:55], s{50+(cb>>1)} offen offset:{1024*(cb&1)}{SC}")
    e("L_gdone:")
    e("s_branch L_jobG_ret")
    return body, hd, pk, o, tagspin("L_gspin", "L_gok")
```

```python
import sys, importlib
sys.path.insert(0, "gen")
from asmlib import *
import k1
NAME = "concat_heads__compressed_kv_cla__grouped_kv_mqa__prompt"
def build(path, which):
    ref = open(f"cdna_kernels/{NAME}.s.ref").read().splitlines()
    hdr = [l for l in ref if l.startswith(";") and "@launch" not in l and "Override" not in l and "grid=ceil" not in l and not l.startswith("    ")]
    hdr = hdr[:15]
    ks = []
    for w in which:
        ks.append(KERNELS[w]())
    out = list(hdr)
    import os
    if os.environ.get("FINAL"):
        assert len(ks) == 1
        ks = [(NAME + "_kernel",) + ks[0][1:]]
    for (name, body, vg, acc, grid, block, lds) in ks:
        out.append(f"; @launch grid=({grid},1,1) block=({block},1,1) lds={lds}" if os.environ.get("FINAL") else
                   f"; @launch kernel={name} grid=({grid},1,1) block=({block},1,1) lds={lds}")
    out += ['.amdgcn_target "amdgcn-amd-amdhsa--gfx950"', ".text"]
    descs = []
    for (name, body, vg, acc, grid, block, lds) in ks:
        t, d = kernel_text(name, body, vg, acc)
        out += t; descs += d
    out.append('.section .rodata,"a"')
    out += descs
    open(path, "w").write("\n".join(out) + "\n")
KERNELS = {
    "k1": lambda: ("kvproj_kernel", k1.gen_k1(), 512, 256, 256, 256, 131072),
}
try:
    import k0
    KERNELS["k0"] = lambda: ("prep_kernel", k0.gen_k0(), k0.VGPR, k0.ACC, k0.GRID, 256, k0.LDS)
except ImportError: pass
try:
    import k2
    KERNELS["k2"] = lambda: ("attn_kernel", k2.gen_k2(), 512, 256, 256, 256, 163840)
except ImportError: pass
try:
    import k3
    KERNELS["k3"] = lambda: ("oproj_kernel", k3.gen_k3(), k3.VGPR, k3.ACC, 256, 256, k3.LDS)
except ImportError: pass
import mega
KERNELS["mega"] = lambda: ("fused_kernel", mega.gen_mega(), 512, 256, 256, 256, 163840)
if __name__ == "__main__":
    build(sys.argv[1], sys.argv[2].split(","))
```
